```python
import torch

def _softmax(x, axis=-1):
    return torch.softmax(x, dim=axis)

def _gelu(x):
    return torch.nn.functional.gelu(x, approximate='tanh')

def _silu(x):
    return torch.nn.functional.silu(x)

def _sigmoid(x):
    return torch.sigmoid(x)

def _layernorm(x, axis=-1, eps=1e-05):
    m = x.mean(dim=axis, keepdim=True)
    v = x.var(dim=axis, keepdim=True, unbiased=False)
    return (x - m) / torch.sqrt(v + eps)

def _scatter_add(tgt, idx, src, axis=0):
    return tgt.clone().index_add_(axis, idx, src)

def _segment_sum(src, seg, n):
    out = torch.zeros((n,) + src.shape[1:], dtype=src.dtype)
    return out.index_add_(0, seg, src)

def _pad(x, pw):
    flat = tuple((v for pair in reversed(pw) for v in pair))
    return torch.nn.functional.pad(x, flat)
kernel_name = 'recurrent_scan__memory_aug_recurrent_mem_tr__dense_activation_squared_relu__prompt'

def setup_inputs():

    _w = lambda a: (lambda t: t.to(torch.bfloat16) if t.is_floating_point() else t)(torch.as_tensor(a))

    def _A_setup():
        B, S, Dm = (1, 2048, 640)
        H, Dh = (32, 128)
        M, seg = (8, 32)
        seg = min(seg, S)
        S = S // seg * seg
        return {'x': _w((lambda *s: torch.randn(*s, dtype=torch.bfloat16) * 0.05)(B, S, Dm)), 'mem0': _w((lambda *s: torch.randn(*s, dtype=torch.bfloat16) * 0.05)(B, M, Dm)), 'Wq': _w((lambda *s: torch.randn(*s, dtype=torch.bfloat16) * 1.6)(Dm, H, Dh) * Dm ** (-0.5)), 'Wk': _w((lambda *s: torch.randn(*s, dtype=torch.bfloat16) * 1.6)(Dm, H, Dh) * Dm ** (-0.5)), 'Wv': _w((lambda *s: torch.randn(*s, dtype=torch.bfloat16) * 0.05)(Dm, H, Dh) * Dm ** (-0.5)), 'Wo': _w((lambda *s: torch.randn(*s, dtype=torch.bfloat16) * 0.05)(H, Dh, Dm) * (H * Dh) ** (-0.5)), 'seg_len': seg}
    _A_in = _A_setup()

    def _B_setup():
        B, S, D, F = (1, 2048, 640, 1728)
        return {'x': _w((lambda *s: torch.randn(*s, dtype=torch.bfloat16) * 0.05)(B, S, D)), 'w1': _w((lambda *s: torch.randn(*s, dtype=torch.bfloat16) * 0.05)(D, F)), 'b1': _w((lambda *s: torch.randn(*s, dtype=torch.bfloat16) * 0.4)(F)), 'w2': _w((lambda *s: torch.randn(*s, dtype=torch.bfloat16) * 0.05)(F, D)), 'b2': _w((lambda *s: torch.randn(*s, dtype=torch.bfloat16) * 3.2)(D))}
    _B_in = _B_setup()
    return {'A_x': _A_in['x'], 'A_mem0': _A_in['mem0'], 'A_Wq': _A_in['Wq'], 'A_Wk': _A_in['Wk'], 'A_Wv': _A_in['Wv'], 'A_Wo': _A_in['Wo'], 'A_seg_len': _A_in['seg_len'], 'B_x': _B_in['x'], 'B_w1': _B_in['w1'], 'B_b1': _B_in['b1'], 'B_w2': _B_in['w2'], 'B_b2': _B_in['b2']}

def reference(A_x, A_mem0, A_Wq, A_Wk, A_Wv, A_Wo, A_seg_len, B_x, B_w1, B_b1, B_w2, B_b2):

    def _A_ref(x, mem0, Wq, Wk, Wv, Wo, seg_len):
        B, S, Dm = x.shape
        H, Dh = (Wq.shape[1], Wq.shape[2])
        M = mem0.shape[1]
        scale = Dh ** (-0.5)
        n_seg = S // seg_len
        L = M + seg_len
        idx = torch.arange(L)
        mask = (idx[:, None] < M) | (idx[:, None] >= idx[None, :])
        mem = mem0
        outs = []
        for s in range(n_seg):
            xs = x[:, s * seg_len:(s + 1) * seg_len, :].clone()
            h = torch.concatenate([mem, xs], axis=1)
            q = torch.einsum('btd,dhe->bhte', h, Wq)
            k = torch.einsum('btd,dhe->bhte', h, Wk)
            v = torch.einsum('btd,dhe->bhte', h, Wv)
            scores = torch.einsum('bhqe,bhke->bhqk', q, k) * scale
            scores = torch.where(mask[None, None], scores, -1000000000.0)
            p = _softmax(scores, axis=-1)
            o = torch.einsum('bhqk,bhke->bhqe', p, v)
            o = torch.einsum('bhte,hed->btd', o, Wo)
            mem = o[:, :M, :].clone()
            outs.append(o[:, M:, :])
        return torch.concatenate(outs, axis=1)

    def _B_ref(x, w1, b1, w2, b2):
        h = torch.einsum('bsd,df->bsf', x, w1) + b1
        zero = torch.zeros_like(h)
        r = torch.where(h > zero, h, zero)
        h = r * r
        out = torch.einsum('bsf,fd->bsd', h, w2) + b2
        return out
    x = A_x
    xn = _layernorm(x, axis=-1)
    s = _A_ref(xn, A_mem0, A_Wq, A_Wk, A_Wv, A_Wo, A_seg_len)
    g = _silu(_B_ref(xn, B_w1, B_b1, B_w2, B_b2))
    return x + s * g
```

```python
class Asm:
    def __init__(self):
        self.lines = []
        self.uid = 0
    def __call__(self, s):
        for l in s.split('\n'):
            l = l.strip()
            if l:
                self.lines.append('    ' + l)
    def label(self, name):
        self.lines.append(name + ':')
    def newlabel(self, base='L'):
        self.uid += 1
        return f'{base}_{self.uid}'
    def comment(self, s):
        self.lines.append('    ; ' + s)
    def text(self):
        return '\n'.join(self.lines) + '\n'

def vr(b, n=1):
    return f'v{b}' if n == 1 else f'v[{b}:{b+n-1}]'
def ar(b, n=1):
    return f'a{b}' if n == 1 else f'a[{b}:{b+n-1}]'
def sr(b, n=1):
    return f's{b}' if n == 1 else f's[{b}:{b+n-1}]'

def R(b, n=1):
    if b >= 256:
        return ar(b-256, n)
    assert b + n <= 256
    return vr(b, n)

KA = dict(x=0, mem0=8, Wq=16, Wk=24, Wv=32, Wo=40, seg=48, Bx=56, w1=64, b1=72, w2=80, b2=88, out=96, dbg=104, ws=112)

XNF = 0x0
QF  = 0x0400000
KF  = 0x1400000
VF  = 0x2400000
HF  = 0x3400000
OF  = 0x3C00000
F0  = 0x4D00000
MEMSLOT = 81920
MEMB = F0 - MEMSLOT
CQK = F0 + 0x500000
CV  = F0 + 0xD00000
PART = F0 + 0x1100000
FILLSZ = 0x1B00000
WOF = 0x6800000
W2F = 0x6E00000

def srd(a, d, ptr_lo, off, size):
    if off:
        a(f's_add_u32 s{d}, s{ptr_lo}, 0x{off:x}')
        a(f's_addc_u32 s{d+1}, s{ptr_lo+1}, 0')
    else:
        a(f's_mov_b32 s{d}, s{ptr_lo}')
        a(f's_mov_b32 s{d+1}, s{ptr_lo+1}')
    a(f's_mov_b32 s{d+2}, 0x{size:x}')
    a(f's_mov_b32 s{d+3}, 0x20000')

def kernel_begin(a, name):
    a.lines.append('.text')
    a.lines.append(f'.globl {name}')
    a.lines.append('.p2align 8')
    a.lines.append(f'.type {name},@function')
    a.label(name)

def kernel_desc(a, name, vgpr, sgpr=102, accum=None):
    if accum is None:
        accum = min(256, (vgpr + 3)//4*4)
    a.lines.append('.section .rodata,"a"')
    a.lines.append('.p2align 6')
    a.lines.append(f'.amdhsa_kernel {name}')
    a.lines.append(f'  .amdhsa_next_free_vgpr {vgpr}')
    a.lines.append(f'  .amdhsa_next_free_sgpr {sgpr}')
    a.lines.append(f'  .amdhsa_accum_offset {accum}')
    a.lines.append('  .amdhsa_group_segment_fixed_size 0')
    a.lines.append('  .amdhsa_kernarg_size 120')
    a.lines.append('  .amdhsa_user_sgpr_count 2')
    a.lines.append('  .amdhsa_user_sgpr_kernarg_segment_ptr 1')
    a.lines.append('  .amdhsa_system_sgpr_workgroup_id_x 1')
    a.lines.append('  .amdhsa_float_denorm_mode_32 3')
    a.lines.append('.end_amdhsa_kernel')
```

```python
from fw import *
def gen_k0(a):
    name = 'ln_init_kernel'
    kernel_begin(a, name)
    a('s_cmp_ge_u32 s2, 432')
    a('s_cbranch_scc1 K0_done')
    a(f's_load_dwordx2 s[4:5], s[0:1], {KA["x"]}')
    a(f's_load_dwordx2 s[6:7], s[0:1], {KA["mem0"]}')
    a(f's_load_dwordx2 s[8:9], s[0:1], {KA["ws"]}')
    a('s_waitcnt lgkmcnt(0)')
    srd(a, 12, 8, F0, FILLSZ)
    a('v_lshlrev_b32 v1, 4, v0')
    a('s_lshl_b32 s3, s2, 16')
    a('v_mov_b32 v4, -1'); a('v_mov_b32 v5, -1'); a('v_mov_b32 v6, -1'); a('v_mov_b32 v7, -1')
    for j in range(16):
        a(f'buffer_store_dwordx4 v[4:7], v1, s[12:15], s3 offen')
        if j < 15:
            a('s_add_u32 s3, s3, 4096')
    a('s_cmp_lt_u32 s2, 128')
    a('s_cbranch_scc1 K0_ln')
    a('s_cmp_ge_u32 s2, 136')
    a('s_cbranch_scc1 K0_done')
    srd(a, 16, 6, 0, 10240)
    a('s_sub_u32 s3, s2, 128')
    a('s_mul_i32 s3, s3, 10240')
    a(f's_add_u32 s3, s3, 0x{MEMB:x}')
    a('s_add_u32 s20, s8, s3')
    a('s_addc_u32 s21, s9, 0')
    a('s_mov_b32 s22, 10240')
    a('s_mov_b32 s23, 0x20000')
    a('v_and_b32 v20, 7, v0')
    a('v_mul_u32_u24 v20, 1280, v20')
    a('v_bfe_u32 v21, v0, 3, 1')
    a('v_lshl_add_u32 v20, v21, 6, v20')
    a('v_bfe_u32 v21, v0, 4, 2')
    a('v_lshl_add_u32 v20, v21, 4, v20')
    a('v_lshrrev_b32 v21, 6, v0')
    a('v_lshl_add_u32 v20, v21, 7, v20')
    for j in range(3):
        a(f'buffer_load_dwordx4 v[{8+4*j}:{11+4*j}], v20, s[16:19], 0 offen offset:{512*j}')
    a('v_add_u32 v3, 4096, v1')
    a('v_add_u32 v4, 8192, v1')
    a('s_waitcnt vmcnt(0)')
    for r in range(8, 20):
        a(f'v_min_u32 v{r}, -2, v{r}')
    a('buffer_store_dwordx4 v[8:11], v1, s[20:23], 0 offen')
    a('buffer_store_dwordx4 v[12:15], v3, s[20:23], 0 offen')
    a('buffer_store_dwordx4 v[16:19], v4, s[20:23], 0 offen')
    a('s_branch K0_done')
    a.label('K0_ln')
    srd(a, 16, 4, 0, 2048*1280)
    srd(a, 20, 8, XNF, 128*20*1024)
    a('v_and_b32 v1, 63, v0')
    a('v_lshrrev_b32 v2, 6, v0')
    a('v_and_b32 v3, 15, v1')
    a('v_lshrrev_b32 v4, 4, v1')
    a('v_mul_u32_u24 v5, 1280, v3')
    a('v_lshl_add_u32 v5, v4, 3, v5')
    a('v_mul_u32_u24 v6, 320, v2')
    a('v_add_u32 v5, v5, v6')
    a('s_mul_i32 s3, s2, 20480')
    for kk in range(5):
        a(f'buffer_load_dwordx2 v[{10+4*kk}:{11+4*kk}], v5, s[16:19], s3 offen offset:{64*kk}')
        a(f'buffer_load_dwordx2 v[{12+4*kk}:{13+4*kk}], v5, s[16:19], s3 offen offset:{64*kk+32}')
    a('v_lshlrev_b32 v7, 6, v3')
    a('v_lshl_add_u32 v8, v2, 4, v7')
    a('v_lshl_add_u32 v8, v4, 2, v8')
    a('s_waitcnt vmcnt(0)')
    for i in range(20):
        a(f'v_lshlrev_b32 v{32+2*i}, 16, v{10+i}')
        a(f'v_and_b32 v{33+2*i}, 0xffff0000, v{10+i}')
    a('v_add_f32 v9, v32, v33')
    for i in range(34, 72):
        a(f'v_add_f32 v9, v9, v{i}')
    a('ds_write_b32 v8, v9')
    a('s_waitcnt lgkmcnt(0)')
    a('s_barrier')
    for j in range(4):
        a(f'ds_read_b128 v[{72+4*j}:{75+4*j}], v7 offset:{16*j}')
    a('s_waitcnt lgkmcnt(0)')
    a('v_add_f32 v9, v72, v73')
    for i in range(74, 88):
        a(f'v_add_f32 v9, v9, v{i}')
    a('v_mul_f32 v9, 0x3acccccd, v9')
    a('v_sub_f32 v30, v32, v9')
    a('v_mul_f32 v31, v30, v30')
    for i in range(33, 72):
        a(f'v_sub_f32 v30, v{i}, v9')
        a('v_fmac_f32 v31, v30, v30')
    a('ds_write_b32 v8, v31 offset:1024')
    a('s_waitcnt lgkmcnt(0)')
    a('s_barrier')
    for j in range(4):
        a(f'ds_read_b128 v[{72+4*j}:{75+4*j}], v7 offset:{1024+16*j}')
    a('s_waitcnt lgkmcnt(0)')
    a('v_add_f32 v31, v72, v73')
    for i in range(74, 88):
        a(f'v_add_f32 v31, v31, v{i}')
    a('v_mul_f32 v31, 0x3acccccd, v31')
    a('v_cvt_pk_bf16_f32 v30, v9, v31')
    a('v_lshlrev_b32 v9, 16, v30')
    a('v_and_b32 v31, 0xffff0000, v30')
    a('v_add_f32 v31, 0x3727c5ac, v31')
    a('v_cvt_pk_bf16_f32 v30, v31, v31')
    a('v_lshlrev_b32 v31, 16, v30')
    a('v_sqrt_f32 v31, v31')
    a('s_nop 0')
    a('v_cvt_pk_bf16_f32 v30, v31, v31')
    a('v_lshlrev_b32 v31, 16, v30')
    a('v_rcp_f32 v31, v31')
    a('s_nop 0')
    for i in range(20):
        a(f'v_sub_f32 v72, v{32+2*i}, v9')
        a(f'v_sub_f32 v73, v{33+2*i}, v9')
        a('v_cvt_pk_bf16_f32 v74, v72, v73')
        a('v_lshlrev_b32 v72, 16, v74')
        a('v_and_b32 v73, 0xffff0000, v74')
        a('v_mul_f32 v72, v72, v31')
        a('v_mul_f32 v73, v73, v31')
        a(f'v_cvt_pk_bf16_f32 v{10+i}, v72, v73')
    a('v_mul_u32_u24 v6, 5120, v2')
    a('v_lshl_add_u32 v6, v1, 4, v6')
    for kk in range(5):
        if kk < 4:
            a(f'buffer_store_dwordx4 v[{10+4*kk}:{13+4*kk}], v6, s[20:23], s3 offen offset:{1024*kk}')
        else:
            a('v_add_u32 v6, 4096, v6')
            a(f'buffer_store_dwordx4 v[{10+4*kk}:{13+4*kk}], v6, s[20:23], s3 offen')
    a.label('K0_done')
    a('s_endpgm')
    return name, dict(vgpr=88, grid=432, block=256, lds=2048)
```

```python
from fw import *
ACC = 0
WF = 128
TF = 160
AW = 176
AT = 192
VW = 194
VT = 196
VL = 197
TMP = 200

def mainloop(a, isV):
    NK = 20
    def dma(k):
        st = k % 4
        for j in range(2):
            a(f's_add_u32 m0, s34, {st*32768 + j*1024}')
            a('s_nop 0')
            a(f'buffer_load_dwordx4 v{VW+j}, s[12:15], s31 offen lds')
        a(f's_add_u32 m0, s35, {st*32768}')
        a('s_nop 0')
        a(f'buffer_load_dwordx4 v{VT}, s[16:19], s32 offen lds')
        a(f's_add_u32 m0, s35, {st*32768 + 1024}')
        a('s_nop 0')
        a(f'buffer_load_dwordx4 v{VT}, s[16:19], s36 offen lds')
        a('s_add_u32 s31, s31, s37')
        a('s_add_u32 s32, s32, 1024')
        a('s_add_u32 s36, s36, 1024')
    for k in range(3):
        dma(k)
    for k in range(NK):
        st = k % 4
        hi = st >= 2
        so = (st % 2) * 32768
        later = min(NK-1, k+2) - k
        a(f's_waitcnt vmcnt({4*later})')
        a('s_barrier')
        if k + 3 < NK:
            dma(k+3)
        q = []
        def rdT(i):
            a(f'ds_read_b128 v[{TF+4*i}:{TF+4*i+3}], v{AT+(1 if hi else 0)} offset:{so+i*1024}')
            q.append(('T', i))
        def rdW(c):
            ad = AW + (8 if hi else 0) + c
            a(f'ds_read_b64_tr_b16 v[{WF+4*c}:{WF+4*c+1}], v{ad} offset:{so}')
            a(f'ds_read_b64_tr_b16 v[{WF+4*c+2}:{WF+4*c+3}], v{ad} offset:{so+8192}')
            q.append(('W', c)); q.append(('W', c))
        def need(tags):
            last = max(i for i, t in enumerate(q) if t in tags) if any(t in tags for t in q) else -1
            if last >= 0:
                n = len(q) - 1 - last
                a(f's_waitcnt lgkmcnt({n})')
                del q[:last+1]
        rdT(0); rdW(0); rdT(1); rdT(2); rdT(3); rdW(1); rdW(2); rdW(3)
        for c in range(8):
            for i in range(4):
                need([('W', c), ('T', i)])
                acc = ACC + (c*4+i)*4
                A, B = (WF+4*c, TF+4*i) if not isV else (TF+4*i, WF+4*c)
                C = '0' if k == 0 else f'v[{acc}:{acc+3}]'
                a(f'v_mfma_f32_16x16x32_bf16 v[{acc}:{acc+3}], v[{A}:{A+3}], v[{B}:{B+3}], {C}')
                if i == 0 and c + 4 < 8:
                    rdW(c+4)
    a('s_nop 7')
    a('s_nop 1')

def gen_k1(a):
    name = 'gemm1_kernel'
    kernel_begin(a, name)
    a('s_cmp_ge_u32 s2, 448')
    a('s_cbranch_scc1 K1_done')
    a('s_and_b32 s3, s2, 7')
    a('s_lshr_b32 s28, s2, 3')
    a('s_lshr_b32 s29, s28, 3')
    a('s_and_b32 s28, s28, 7')
    a('s_lshl_b32 s29, s29, 3')
    a('s_add_u32 s29, s29, s3')
    a('s_cmp_ge_u32 s29, 55')
    a('s_cbranch_scc1 K1_done')
    a(f's_load_dwordx4 s[40:43], s[0:1], {KA["Wq"]}')
    a(f's_load_dwordx2 s[44:45], s[0:1], {KA["Wv"]}')
    a(f's_load_dwordx4 s[48:51], s[0:1], {KA["w1"]}')
    a(f's_load_dwordx2 s[6:7], s[0:1], {KA["ws"]}')
    a('v_lshrrev_b32 v1, 6, v0')
    a('s_nop 0')
    a('v_readfirstlane_b32 s33, v1')
    a('s_lshr_b32 s38, s29, 4')
    a('s_waitcnt lgkmcnt(0)')
    a('s_cmp_eq_u32 s38, 0')
    a('s_cselect_b32 s4, s40, s42'); a('s_cselect_b32 s5, s41, s43')
    a('s_cmp_eq_u32 s38, 2')
    a('s_cselect_b32 s4, s44, s4'); a('s_cselect_b32 s5, s45, s5')
    a('s_cmp_eq_u32 s38, 3')
    a('s_cselect_b32 s4, s48, s4'); a('s_cselect_b32 s5, s49, s5')
    a('s_mov_b32 s30, 8192'); a('s_cmov_b32 s30, 3456')
    a(f's_mov_b32 s14, {640*8192}'); a(f's_cmov_b32 s14, {640*3456}')
    a('s_mov_b32 s12, s4'); a('s_mov_b32 s13, s5'); a('s_mov_b32 s15, 0x20000')
    srd(a, 16, 6, XNF, 128*20*1024)
    a('s_and_b32 s39, s29, 15')
    a('s_lshl_b32 s46, s39, 9')
    a('s_lshl_b32 s37, s30, 5')
    a('s_mov_b32 s31, 0')
    a('s_mul_i32 s32, s28, 16*20*1024')
    a('s_add_u32 s36, s32, 20480')
    a('s_lshl_b32 s34, s33, 11')
    a('s_lshl_b32 s35, s33, 11')
    a('s_add_u32 s35, s35, 16384')
    a('v_and_b32 v1, 63, v0')
    a(f'v_lshlrev_b32 v{VL}, 4, v1')
    a('v_lshrrev_b32 v2, 5, v1')
    a('s_lshl_b32 s47, s33, 2')
    for j in range(2):
        a(f'v_add_u32 v3, s47, v2')
        if j: a('v_add_u32 v3, 2, v3')
        a('v_and_b32 v4, 7, v3')
        a('v_lshlrev_b32 v4, 1, v4')
        a('v_and_b32 v5, 31, v1')
        a('v_xor_b32 v4, v4, v5')
        a('v_lshlrev_b32 v4, 4, v4')
        a('v_mul_lo_u32 v3, v3, s30')
        a('v_add_u32 v3, v3, v4')
        a(f'v_add_u32 v{VW+j}, s46, v3')
    a('s_mul_i32 s47, s33, 40960')
    a(f'v_add_u32 v{VT}, s47, v{VL}')
    a('s_lshr_b32 s52, s33, 1')
    a('s_and_b32 s53, s33, 1')
    a('s_lshl_b32 s47, s52, 12')
    a('s_add_u32 s47, s47, 16384')
    a(f'v_add_u32 v{AT}, s47, v{VL}')
    a(f'v_add_u32 v{AT+1}, 0x10000, v{AT}')
    a('v_lshrrev_b32 v2, 4, v1')
    a('v_bfe_u32 v3, v1, 2, 2')
    a('v_lshl_add_u32 v4, v2, 2, v3')
    a('v_and_b32 v5, 7, v4')
    a('v_lshlrev_b32 v4, 9, v4')
    a('v_and_b32 v6, 3, v1')
    a('v_lshl_add_u32 v4, v6, 3, v4')
    a('s_lshl_b32 s47, s53, 8')
    a('v_add_u32 v4, s47, v4')
    for c in range(8):
        a(f'v_xor_b32 v6, {c}, v5')
        a(f'v_lshl_add_u32 v{AW+c}, v6, 5, v4')
        a(f'v_add_u32 v{AW+8+c}, 0x10000, v{AW+c}')
    a('s_cmp_eq_u32 s38, 2')
    a('s_cbranch_scc1 K1_V')
    mainloop(a, False)
    a('s_cmp_eq_u32 s38, 3')
    a('s_cbranch_scc1 K1_F')
    a(f's_cmp_eq_u32 s38, 0')
    a(f's_mov_b32 s47, 0x{KF:x}'); a(f's_cmov_b32 s47, 0x{QF:x}')
    a('s_add_u32 s20, s6, s47'); a('s_addc_u32 s21, s7, 0')
    a('s_mov_b32 s22, 0x1000000'); a('s_mov_b32 s23, 0x20000')
    a('s_lshl_b32 s47, s28, 4')
    a('s_lshl_b32 s54, s52, 2')
    a('s_add_u32 s47, s47, s54')
    a('s_lshl_b32 s47, s47, 5')
    a('s_lshl_b32 s54, s39, 1')
    a('s_add_u32 s54, s54, s53')
    a('s_add_u32 s47, s47, s54')
    a('s_lshl_b32 s47, s47, 12')
    for i in range(4):
        for u in range(4):
            t = TMP + 4*((i*4+u) % 4)
            a0 = ACC + ((2*u)*4+i)*4
            a1 = ACC + ((2*u+1)*4+i)*4
            a(f'v_cvt_pk_bf16_f32 v{t}, v{a0}, v{a0+1}')
            a(f'v_cvt_pk_bf16_f32 v{t+1}, v{a0+2}, v{a0+3}')
            a(f'v_cvt_pk_bf16_f32 v{t+2}, v{a1}, v{a1+1}')
            a(f'v_cvt_pk_bf16_f32 v{t+3}, v{a1+2}, v{a1+3}')
            a(f'buffer_store_dwordx4 v[{t}:{t+3}], v{VL}, s[20:23], s47 offen offset:{u*1024}')
        if i < 3:
            a('s_add_u32 s47, s47, 131072')
    a('s_branch K1_done')
    a.label('K1_F')
    srd(a, 20, 6, HF, 128*54*1024)
    srd(a, 24, 50, 0, 3456)
    a(f'v_lshrrev_b32 v251, 8, v{VL}')
    a('v_lshlrev_b32 v251, 3, v251')
    a('s_lshl_b32 s47, s53, 8')
    a('s_add_u32 s47, s47, s46')
    for c in range(8):
        a(f'buffer_load_dwordx2 v[{WF+2*c}:{WF+2*c+1}], v251, s[24:27], s47 offen offset:{32*c}')
    a('s_waitcnt vmcnt(0)')
    BB = 144
    for c in range(8):
        for p in range(2):
            src = WF + 2*c + p
            a(f'v_lshlrev_b32 v{248}, 16, v{src}')
            a(f'v_and_b32 v{249}, 0xffff0000, v{src}')
            a(f'v_mov_b32 v{216+4*c+2*p}, v{248}')
            a(f'v_mov_b32 v{216+4*c+2*p+1}, v{249}')
    a('s_lshl_b32 s47, s28, 4')
    a('s_lshl_b32 s54, s52, 2')
    a('s_add_u32 s47, s47, s54')
    a('s_mul_i32 s47, s47, 54')
    a('s_lshl_b32 s54, s39, 3')
    a('s_lshl_b32 s55, s53, 2')
    a('s_add_u32 s54, s54, s55')
    a('s_add_u32 s47, s47, s54')
    a('s_lshl_b32 s47, s47, 10')
    for u in range(4):
        if u == 2:
            a('s_cmp_ge_u32 s54, 52')
            a('s_cbranch_scc1 K1_done')
        a('s_mov_b32 s55, s47')
        for i in range(4):
            t = TMP + 4*(i % 4)
            for half in range(2):
                c = 2*u + half
                ac = ACC + (c*4+i)*4
                for p in range(2):
                    x0, x1 = 248, 249
                    a(f'v_cvt_pk_bf16_f32 v{250}, v{ac+2*p}, v{ac+2*p+1}')
                    a(f'v_lshlrev_b32 v{x0}, 16, v{250}')
                    a(f'v_and_b32 v{x1}, 0xffff0000, v{250}')
                    a(f'v_add_f32 v{x0}, v{x0}, v{216+4*c+2*p}')
                    a(f'v_add_f32 v{x1}, v{x1}, v{216+4*c+2*p+1}')
                    a(f'v_cvt_pk_bf16_f32 v{250}, v{x0}, v{x1}')
                    a(f'v_lshlrev_b32 v{x0}, 16, v{250}')
                    a(f'v_and_b32 v{x1}, 0xffff0000, v{250}')
                    a(f'v_max_f32 v{x0}, 0, v{x0}')
                    a(f'v_max_f32 v{x1}, 0, v{x1}')
                    a(f'v_mul_f32 v{x0}, v{x0}, v{x0}')
                    a(f'v_mul_f32 v{x1}, v{x1}, v{x1}')
                    a(f'v_cvt_pk_bf16_f32 v{t+2*half+p}, v{x0}, v{x1}')
            a(f'buffer_store_dwordx4 v[{t}:{t+3}], v{VL}, s[20:23], s55 offen offset:{u*1024}')
            if i < 3:
                a(f's_add_u32 s55, s55, {54*1024}')
    a('s_branch K1_done')
    a.label('K1_V')
    mainloop(a, True)
    srd(a, 20, 6, VF, 0x1000000)
    a('s_lshl_b32 s47, s28, 3')
    a('s_lshl_b32 s54, s52, 1')
    a('s_add_u32 s47, s47, s54')
    a('s_lshl_b32 s47, s47, 5')
    a('s_lshl_b32 s54, s39, 1')
    a('s_add_u32 s54, s54, s53')
    a('s_add_u32 s47, s47, s54')
    a('s_lshl_b32 s47, s47, 13')
    for sp in range(2):
        for c in range(8):
            t = TMP + 4*(c % 4)
            a0 = ACC + (c*4+2*sp)*4
            a1 = ACC + (c*4+2*sp+1)*4
            a(f'v_cvt_pk_bf16_f32 v{t}, v{a0}, v{a0+1}')
            a(f'v_cvt_pk_bf16_f32 v{t+1}, v{a0+2}, v{a0+3}')
            a(f'v_cvt_pk_bf16_f32 v{t+2}, v{a1}, v{a1+1}')
            a(f'v_cvt_pk_bf16_f32 v{t+3}, v{a1+2}, v{a1+3}')
            a(f'buffer_store_dwordx4 v[{t}:{t+3}], v{VL}, s[20:23], s47 offen offset:{(c%4)*1024}')
            if c == 3:
                a('s_add_u32 s47, s47, 4096')
        if sp == 0:
            a(f's_add_u32 s47, s47, {32*8192 - 4096}')
    a.label('K1_done')
    a('s_endpgm')
    return name, dict(vgpr=252, grid=448, block=512, lds=131072)
```

```python
from fw import *
import struct
def f2u(x): return struct.unpack('<I', struct.pack('<f', x))[0]
CEXP = f2u((128 ** -0.5) * 1.4426950408889634)

import os
DIAG = int(os.environ.get('DIAG', '0'))
DBGT = 0x8000000
DSLP = int(os.environ.get('DSLP', '4'))
def stamp(a, i):
    if DIAG:
        a(f's_memrealtime s[{64+2*i}:{65+2*i}]')
        a('s_waitcnt lgkmcnt(0)')
def flush(a):
    if DIAG:
        a('s_mov_b64 s[90:91], exec')
        a('s_mov_b64 exec, 1')
        a('s_lshl_b32 s88, s40, 5'); a('s_add_u32 s88, s88, s41'); a('s_lshl_b32 s88, s88, 3'); a('s_add_u32 s88, s88, s33')
        a('s_lshl_b32 s88, s88, 6'); a('s_add_u32 s88, s88, s43'); a('s_lshl_b32 s88, s88, 5')
        for i in range(7):
            a(f'v_mov_b32 v{248+i}, s{64+2*i}')
        a('v_mov_b32 v255, s44')
        a('v_mov_b32 v247, 0')
        a('buffer_store_dwordx4 v[248:251], v247, s[84:87], s88 offen')
        a('buffer_store_dwordx4 v[252:255], v247, s[84:87], s88 offen offset:16')
        a('s_mov_b64 exec, s[90:91]')
def xstore(a, instr):
    l1 = a.newlabel('XS'); l2 = a.newlabel('XD')
    a('s_cmp_lg_u32 s42, 0')
    a(f's_cbranch_scc1 {l1}')
    a(instr)
    a(f's_branch {l2}')
    a.label(l1)
    a(instr + ' sc1')
    a.label(l2)

def maxchk(a, regs, t):
    regs = list(regs)
    a(f'v_max3_u32 v{t}, v{regs[0]}, v{regs[1]}, v{regs[2]}')
    i = 3
    while i + 1 < len(regs):
        a(f'v_max3_u32 v{t}, v{t}, v{regs[i]}, v{regs[i+1]}'); i += 2
    if i < len(regs):
        a(f'v_max_u32 v{t}, v{t}, v{regs[i]}')
    a(f'v_cmp_eq_u32 vcc, -1, v{t}')

def gen_k2(a):
    name = 'chain_kernel'
    kernel_begin(a, name)
    a('s_cmp_ge_u32 s2, 256')
    a('s_cbranch_scc1 K2_done')
    a(f's_load_dwordx8 s[48:55], s[0:1], {KA["Wq"]}')
    a(f's_load_dwordx4 s[56:59], s[0:1], {KA["dbg"]}')
    a('v_lshrrev_b32 v1, 6, v0')
    a('s_nop 0')
    a('v_readfirstlane_b32 s33, v1')
    a('v_and_b32 v0, 63, v0')
    a('s_mov_b32 s44, 0x400000')
    a('s_waitcnt lgkmcnt(0)')
    a('s_cmp_lg_u32 s33, 0')
    a('s_cbranch_scc1 K2_wait_role')
    srd(a, 4, 56, 0, 256)
    a('s_getreg_b32 s40, hwreg(HW_REG_XCC_ID)')
    a('s_and_b32 s40, s40, 7')
    a('s_mov_b64 exec, 1')
    a('s_lshl_b32 s3, s40, 2')
    a('v_mov_b32 v1, s3')
    a('v_mov_b32 v2, 1')
    a('buffer_atomic_add v2, v1, s[4:7], 0 offen sc0')
    a('s_waitcnt vmcnt(0)')
    a('v_mov_b32 v3, 1')
    a('v_mov_b32 v1, 32')
    a('buffer_atomic_add v3, v1, s[4:7], 0 offen sc0')
    a('s_waitcnt vmcnt(0)')
    a('v_readfirstlane_b32 s41, v2')
    a('v_readfirstlane_b32 s45, v3')
    a.label('K2_reg_poll')
    a('s_sub_u32 s44, s44, 1')
    a('s_cbranch_scc1 K2_done')
    a('buffer_load_dword v4, v1, s[4:7], 0 offen sc1')
    a('s_waitcnt vmcnt(0)')
    a('v_readfirstlane_b32 s3, v4')
    a('s_cmp_lt_u32 s3, 256')
    a('s_cbranch_scc1 K2_reg_poll')
    a('s_mov_b64 exec, 0xff')
    a('v_lshlrev_b32 v1, 2, v0')
    a('buffer_load_dword v4, v1, s[4:7], 0 offen sc1')
    a('s_waitcnt vmcnt(0)')
    a('v_cmp_ne_u32 vcc, 32, v4')
    a('s_mov_b32 s42, 0')
    a('s_cmp_eq_u64 vcc, 0')
    a('s_cbranch_scc1 K2_reg_fast')
    a('s_mov_b32 s42, 1')
    a('s_lshr_b32 s40, s45, 5')
    a('s_and_b32 s41, s45, 31')
    a.label('K2_reg_fast')
    a('s_mov_b64 exec, 1')
    a('v_mov_b32 v4, s40'); a('v_mov_b32 v5, s41'); a('v_mov_b32 v6, s42'); a('v_mov_b32 v7, 0')
    a('v_mov_b32 v1, 8192')
    a('ds_write_b128 v1, v[4:7]')
    a('s_waitcnt lgkmcnt(0)')
    a('s_mov_b64 exec, -1')
    a.label('K2_wait_role')
    a('s_barrier')
    a('v_mov_b32 v1, 8192')
    a('ds_read_b128 v[4:7], v1')
    a('s_waitcnt lgkmcnt(0)')
    a('v_readfirstlane_b32 s40, v4')
    a('v_readfirstlane_b32 s41, v5')
    a('v_readfirstlane_b32 s42, v6')
    a('s_and_b32 s40, s40, 7')
    a('s_and_b32 s41, s41, 31')
    a('s_mov_b32 s43, 0')
    if DIAG:
        srd(a, 84, 58, DBGT, 256*8*64*32)
    a('s_cmp_lt_u32 s33, 4')
    a('s_cbranch_scc1 K2_attn')
    a('s_cmp_eq_u32 s33, 7')
    a('s_cbranch_scc1 K2_red')

    a('s_cmp_eq_u32 s33, 4')
    a('s_cselect_b32 s4, s48, s50'); a('s_cselect_b32 s5, s49, s51')
    a('s_cmp_eq_u32 s33, 6')
    a('s_cselect_b32 s4, s52, s4'); a('s_cselect_b32 s5, s53, s5')
    a(f's_mov_b32 s6, {640*8192}'); a('s_mov_b32 s7, 0x20000')
    a('s_lshr_b32 s46, s41, 3')
    a('s_lshl_b32 s3, s40, 2')
    a('s_add_u32 s46, s46, s3')
    a('s_and_b32 s47, s41, 7')
    a('v_and_b32 v241, 15, v0')
    a('v_lshrrev_b32 v242, 4, v0')
    a('s_lshl_b32 s3, s46, 8')
    a('s_lshl_b32 s8, s47, 5')
    a('s_add_u32 s3, s3, s8')
    a('v_lshlrev_b32 v240, 16, v242')
    a('v_lshl_add_u32 v240, v241, 1, v240')
    a('v_add_u32 v240, s3, v240')
    a('v_mov_b32 v243, v0')
    for kk in range(20):
        for m in range(8):
            a(f's_mov_b32 s3, {(32*kk+m)*8192}')
            a(f'buffer_load_ushort v{80+kk*8+m}, v240, s[4:7], s3 offen')
    a('s_waitcnt vmcnt(0)')
    for kk in range(20):
        for p in range(4):
            a(f'v_lshl_or_b32 v{kk*4+p}, v{80+kk*8+2*p+1}, 16, v{80+kk*8+2*p}')
    srd(a, 8, 58, MEMB, 64*MEMSLOT)
    a('v_lshlrev_b32 v168, 4, v243')
    a('s_mul_i32 s16, s40, 10240')
    a('s_cmp_eq_u32 s33, 6')
    a('s_cbranch_scc1 K2_vsetup')
    srd(a, 12, 58, CQK, 64*32*4096)
    a('s_and_b32 s3, s47, 1'); a('s_lshl_b32 s3, s3, 3')
    a('s_lshr_b32 s17, s47, 1'); a('s_lshl_b32 s17, s17, 10'); a('s_add_u32 s3, s3, s17')
    a('s_sub_u32 s17, s33, 4'); a('s_lshl_b32 s17, s17, 7'); a('s_add_u32 s3, s3, s17')
    a('s_lshl_b32 s17, s46, 12'); a('s_add_u32 s3, s3, s17')
    a('v_add_u32 v169, s3, v168')
    a('s_mov_b32 s18, 131072')
    a('s_mov_b32 s20, 0x00ff00ff'); a('s_mov_b32 s21, 0x00ff00ff')
    a('s_branch K2_qkv_go')
    a.label('K2_vsetup')
    srd(a, 12, 58, CV, 64*32*2048)
    a('s_and_b32 s3, s47, 1'); a('s_lshl_b32 s3, s3, 3')
    a('s_lshr_b32 s17, s47, 1'); a('s_lshl_b32 s17, s17, 9'); a('s_add_u32 s3, s3, s17')
    a('s_lshl_b32 s17, s46, 11'); a('s_add_u32 s3, s3, s17')
    a('v_add_u32 v169, s3, v168')
    a('s_mov_b32 s18, 65536')
    a('s_mov_b32 s20, -1'); a('s_mov_b32 s21, 0')
    a.label('K2_qkv_go')
    a('s_setprio 2')
    a('s_mov_b32 s17, 0')
    srd(a, 24, 58, KF, 0x2000000)
    a('s_lshl_b32 s28, s40, 14')
    a('s_lshl_b32 s29, s40, 15')
    a('s_add_u32 s29, s29, 0x1000000')
    def dma_kv(tag):
        rng = [(0, 22), (22, 43), (43, 64)]
        for m in range(3):
            if tag == 'V' and m < 2: continue
            if tag == 'Q' and m == 2: continue
            if tag != 'V' and m < (1 if tag == 'Q' else 2):
                a(f's_cmp_lg_u32 s33, {4+m}')
                a(f's_cbranch_scc1 K2_dma{tag}{m+1}')
            for q in range(*rng[m]):
                head, f, isv = q >> 4, q & 7, (q >> 3) & 1
                rel = head*8192 + f*1024 if isv else head*4096 + (f >> 2)*131072 + (f & 3)*1024
                a(f's_mov_b32 m0, {16384 + q*1024}')
                a(f's_add_u32 s34, s{29 if isv else 28}, {rel}')
                a('buffer_load_dwordx4 v168, s[24:27], s34 offen lds')
            a(f's_branch K2_dmae{tag}')
            a.label(f'K2_dma{tag}{m+1}')
        a.label(f'K2_dmae{tag}')
        a('s_add_u32 s28, s28, 262144')
        a('s_add_u32 s29, s29, 262144')
    def warm(tag, ahead):
        a('s_cmp_eq_u32 s33, 6')
        a(f's_cbranch_scc1 K2_wdone{tag}')
        a('s_lshl_b32 s31, s41, 1')
        a('s_add_u32 s31, s31, s33')
        a('s_sub_u32 s31, s31, 4')
        a('s_lshr_b32 s34, s31, 4')
        a('s_and_b32 s35, s31, 7')
        a('s_bitcmp1_b32 s31, 3')
        a(f's_cbranch_scc1 K2_wv{tag}')
        a('s_lshl_b32 s34, s34, 12')
        a('s_lshr_b32 s36, s35, 2')
        a('s_lshl_b32 s36, s36, 17')
        a('s_and_b32 s35, s35, 3')
        a('s_add_u32 s34, s34, s36')
        a('s_add_u32 s34, s34, s28')
        a(f's_branch K2_wi{tag}')
        a.label(f'K2_wv{tag}')
        a('s_lshl_b32 s34, s34, 13')
        a('s_add_u32 s34, s34, s29')
        a.label(f'K2_wi{tag}')
        a('s_lshl_b32 s35, s35, 10')
        a('s_add_u32 s34, s34, s35')
        a(f's_add_u32 s34, s34, {262144*ahead}')
        a('buffer_load_dwordx4 v[176:179], v168, s[24:27], s34 offen')
        a.label(f'K2_wdone{tag}')
    warm('a', 1); warm('b', 2)
    dma_kv('0')
    a('s_waitcnt vmcnt(0)')
    a('s_barrier')
    a('v_add_u32 v170, 4096, v168')
    a('v_add_u32 v171, 8192, v168')
    def mload(j):
        a(f'buffer_load_dwordx4 v[{80+4*j}:{83+4*j}], v{168 if j < 4 else 170 if j < 8 else 171}, s[8:11], s16 offen offset:{1024*(j%4)} sc1')
    for isV in (False, True):
        sfx = 'V' if isV else 'Q'
        if not isV:
            a('s_cmp_eq_u32 s33, 6')
            a('s_cbranch_scc1 K2_qkv_loopV')
        a.label(f'K2_qkv_loop{sfx}')
        stamp(a, 0)
        for j in range(10):
            mload(j)
        for g in range(5):
            a.label(f'K2_qchk{sfx}{g}')
            a(f's_waitcnt vmcnt({2*(4-g)})')
            maxchk(a, range(80+8*g, 88+8*g), 172)
            a(f's_cbranch_vccnz K2_qret{sfx}{g}')
            if g == 0: stamp(a, 1)
            if g == 4: stamp(a, 2)
            for kk in range(4*g, 4*g+4):
                j = kk >> 1
                D = 160 + 4*(kk & 1)
                C = '0' if kk < 2 else f'v[{D}:{D+3}]'
                if isV:
                    a(f'v_mfma_f32_16x16x32_bf16 v[{D}:{D+3}], v[{80+4*j}:{83+4*j}], v[{4*kk}:{4*kk+3}], {C}')
                else:
                    a(f'v_mfma_f32_16x16x32_bf16 v[{D}:{D+3}], v[{4*kk}:{4*kk+3}], v[{80+4*j}:{83+4*j}], {C}')
        a('s_nop 7')
        if isV:
            for r in range(4):
                a(f'v_permlane32_swap_b32 v{164+r}, v{172+r}')
            for r in range(4):
                a(f'v_add_f32 v{160+r}, v{160+r}, v{172+r}')
        else:
            for r in range(4):
                a(f'v_add_f32_dpp v{160+r}, v{164+r}, v{160+r} row_ror:8 row_mask:0xf bank_mask:0xf')
        a('v_cvt_pk_bf16_f32 v164, v160, v161')
        a('v_cvt_pk_bf16_f32 v165, v162, v163')
        a('v_min_u32 v164, -2, v164')
        a('v_min_u32 v165, -2, v165')
        a('s_mov_b64 exec, s[20:21]')
        xstore(a, 'buffer_store_dwordx2 v[164:165], v169, s[12:15], s17 offen')
        a('s_mov_b64 exec, -1')
        stamp(a, 3)
        flush(a)
        a('s_add_u32 s43, s43, 1')
        a('s_cmp_ge_u32 s43, 64')
        a('s_cbranch_scc1 K2_done')
        a('s_add_u32 s17, s17, s18')
        a(f's_add_u32 s16, s16, {MEMSLOT}')
        a('s_barrier')
        a('s_setprio 0')
        a(f's_sleep {DSLP}')
        warm(sfx, 2)
        dma_kv(sfx)
        a('s_setprio 2')
        a('s_barrier')
        a('s_waitcnt vmcnt(0)')
        a('s_barrier')
        a(f's_branch K2_qkv_loop{sfx}')
        for g in range(5):
            a.label(f'K2_qret{sfx}{g}')
            a('s_sub_u32 s44, s44, 1')
            a('s_cbranch_scc1 K2_done')
            a('s_waitcnt vmcnt(0)')
            for j in range(2*g, 10):
                mload(j)
            a(f's_branch K2_qchk{sfx}{g}')

    a.label('K2_red')
    srd(a, 8, 58, PART, 64*8*32*640)
    srd(a, 12, 58, MEMB, 64*MEMSLOT)
    a('s_mov_b32 exec_lo, -1'); a('s_mov_b32 exec_hi, 0xff')
    a('v_lshlrev_b32 v1, 4, v0')
    a('s_mul_i32 s3, s41, 640')
    a('v_add_u32 v2, s3, v1')
    for xx in range(8):
        a(f'v_add_u32 v{8+xx}, {xx*20480}, v2')
    a('s_mul_i32 s3, s40, 20480')
    a('v_add_u32 v3, s3, v2')
    a('v_lshrrev_b32 v5, 3, v0')
    a('s_mul_i32 s3, s41, 20')
    a('v_lshl_add_u32 v5, v5, 2, s3')
    a('v_and_b32 v4, 7, v0')
    a('v_lshlrev_b32 v4, 4, v4')
    a('v_lshrrev_b32 v6, 6, v5')
    a('v_lshl_add_u32 v4, v6, 10, v4')
    a('v_bfe_u32 v6, v5, 3, 2')
    a('v_lshl_add_u32 v4, v6, 8, v4')
    a('v_bfe_u32 v6, v5, 5, 1')
    a('v_lshl_add_u32 v4, v6, 7, v4')
    a('v_bfe_u32 v6, v5, 2, 1')
    a('v_lshl_add_u32 v4, v6, 3, v4')
    a('s_mul_i32 s16, s40, 10240')
    a('v_add_u32 v4, s16, v4')
    a('s_mov_b32 s16, 0')
    a(f's_mov_b32 s17, {MEMSLOT}')
    a('s_setprio 3')
    a('s_barrier')
    a.label('K2_red_loop')
    a('s_barrier')
    a('s_barrier')
    stamp(a, 0)
    for w in range(4):
        a(f'ds_read_b128 v[{16+4*w}:{19+4*w}], v1 offset:{640*w}')
    a('s_waitcnt lgkmcnt(0)')
    for r in range(4):
        a(f'v_add_f32 v{16+r}, v{16+r}, v{20+r}')
        a(f'v_add_f32 v{24+r}, v{24+r}, v{28+r}')
    for r in range(4):
        a(f'v_add_f32 v{16+r}, v{16+r}, v{24+r}')
    for r in range(4):
        a(f'v_min_u32 v{16+r}, -2, v{16+r}')
    a('buffer_store_dwordx4 v[16:19], v3, s[8:11], s16 offen sc1')
    def pollset(b):
        for xx in range(8):
            a(f'buffer_load_dwordx4 v[{b+4*xx}:{b+3+4*xx}], v{8+xx}, s[8:11], s16 offen sc1')
    pollset(32)
    stamp(a, 1)
    a.label('K2_red_pollA')
    pollset(64)
    a('s_waitcnt vmcnt(8)')
    maxchk(a, range(32, 64), 6)
    a('s_cbranch_vccz K2_red_okA')
    pollset(32)
    a('s_waitcnt vmcnt(8)')
    maxchk(a, range(64, 96), 6)
    a('s_cbranch_vccz K2_red_okB')
    a('s_sub_u32 s44, s44, 1')
    a('s_cbranch_scc0 K2_red_pollA')
    a('s_branch K2_done')
    for b, lb in ((64, 'B'), (32, 'A')):
        a.label(f'K2_red_ok{lb}')
        stamp(a, 2)
        for r in range(4):
            a(f'v_add_f32 v{20+r}, v{b+r}, v{b+4+r}')
            for xx in range(2, 8):
                a(f'v_add_f32 v{20+r}, v{20+r}, v{b+4*xx+r}')
        if lb == 'B':
            a('s_branch K2_red_sum')
    a.label('K2_red_sum')
    a('v_cvt_pk_bf16_f32 v24, v20, v21')
    a('v_cvt_pk_bf16_f32 v25, v22, v23')
    a('v_min_u32 v24, -2, v24')
    a('v_min_u32 v25, -2, v25')
    xstore(a, 'buffer_store_dwordx2 v[24:25], v4, s[12:15], s17 offen')
    stamp(a, 3)
    a('s_barrier')
    flush(a)
    a('s_add_u32 s43, s43, 1')
    a('s_cmp_ge_u32 s43, 63')
    a('s_cbranch_scc1 K2_done')
    a('s_add_u32 s16, s16, 163840')
    a(f's_add_u32 s17, s17, {MEMSLOT}')
    a('s_branch K2_red_loop')

    KX, VX, WO, Q, KM, VM, S, BIAS, P, O, OB, RR = 0, 32, 64, 96, 112, 128, 144, 156, 160, 168, 200, 216
    a.label('K2_attn')
    a('s_lshl_b32 s46, s40, 2')
    a('s_add_u32 s46, s46, s33')
    a('v_mov_b32 v243, v0')
    a('v_and_b32 v241, 15, v0')
    a('v_lshrrev_b32 v242, 4, v0')
    srd(a, 4, 54, 0, 4096*1280)
    a('v_mul_u32_u24 v240, 5120, v242')
    a('v_lshl_add_u32 v240, v241, 1, v240')
    a('s_mul_i32 s3, s46, 163840')
    a('s_mul_i32 s8, s41, 40')
    a('s_add_u32 s3, s3, s8')
    a('v_add_u32 v240, s3, v240')
    for tile in range(2):
        for u in range(4):
            for m in range(8):
                e = 32*u + (m if m < 4 else 16 + m - 4)
                a(f's_mov_b32 s3, {e*1280 + 32*tile}')
                a(f'buffer_load_ushort v{96+(tile*4+u)*8+m}, v240, s[4:7], s3 offen')
    a('s_waitcnt vmcnt(0)')
    for f in range(8):
        for p in range(4):
            a(f'v_lshl_or_b32 v{WO+f*4+p}, v{96+f*8+2*p+1}, 16, v{96+f*8+2*p}')
    srd(a, 8, 58, KF, 0x1000000)
    srd(a, 12, 58, VF, 0x1000000)
    srd(a, 16, 58, CQK, 64*32*4096)
    srd(a, 20, 58, CV, 64*32*2048)
    a('v_lshlrev_b32 v224, 4, v243')
    a('v_add_u32 v225, 0x20000, v224')
    a('v_add_u32 v226, 4096, v224')
    a('v_and_b32 v227, 7, v243')
    a('v_lshlrev_b32 v227, 4, v227')
    a('v_lshl_add_u32 v227, v242, 7, v227')
    a('v_and_b32 v228, 31, v243')
    a('v_lshlrev_b32 v228, 4, v228')
    a('s_mul_i32 s3, s33, 640')
    a('v_add_u32 v229, s3, v227')
    a('v_add_u32 v231, 4096, v224')
    a('v_cmp_gt_u32 vcc, 8, v241')
    a('s_nop 1')
    a('v_cndmask_b32 v229, v231, v229, vcc')
    a('s_add_u32 s3, s3, 512')
    a('v_add_u32 v230, s3, v224')
    a('v_cmp_gt_u32 vcc, 8, v243')
    a('s_nop 1')
    a('v_cndmask_b32 v230, v231, v230, vcc')
    a('v_mov_b32 v232, 0xf149f2ca')
    a('v_cmp_gt_u32 vcc, 32, v243')
    a('s_nop 1')
    for r in range(4):
        a(f'v_cndmask_b32 v{BIAS+r}, 0, v232, vcc')
    for r in range(16):
        a(f'v_mov_b32 v{VM+r}, 0')
    a('s_lshl_b32 s24, s46, 12')
    a('s_lshl_b32 s25, s46, 13')
    a('s_lshl_b32 s26, s46, 12')
    a('s_lshl_b32 s27, s46, 11')
    a(f's_mov_b32 s28, 0x{CEXP:x}')
    a('s_lshl_b32 s3, s33, 14')
    a('s_add_u32 s3, s3, 16384')
    a('v_add_u32 v225, s3, v224')
    def prefetch():
        for f in range(16):
            a(f'ds_read_b128 v[{KX+4*f}:{KX+4*f+3}], v225 offset:{f*1024}')
        a('s_waitcnt lgkmcnt(0)')
    def ld_qk():
        for u in range(4):
            a(f'buffer_load_dwordx4 v[{Q+4*u}:{Q+4*u+3}], v224, s[16:19], s26 offen offset:{u*1024} sc1')
    def ld_vm():
        a('s_mov_b32 exec_lo, 0')
        for u in range(4):
            a(f'buffer_load_dwordx4 v[{VM+4*u}:{VM+4*u+3}], v228, s[20:23], s27 offen offset:{u*512} sc1')
        a('s_mov_b32 exec_lo, -1')
    a('s_setprio 1')
    a('s_barrier')
    prefetch()
    a.label('K2_at_loop')
    a('s_barrier')
    stamp(a, 0)
    ld_qk()
    ld_vm()
    a.label('K2_at_chk')
    a('s_waitcnt vmcnt(4)')
    maxchk(a, range(Q, Q+16), 232)
    a('s_cbranch_vccnz K2_at_ret')
    stamp(a, 1)
    for u in range(4):
        for t3 in range(3):
            A = (KX + (t3*4+u)*4) if t3 < 2 else Q + 4*u
            acc = S + 4*t3
            if u == 0:
                C = f'v[{BIAS}:{BIAS+3}]' if t3 == 2 else '0'
            else:
                C = f'v[{acc}:{acc+3}]'
            a(f'v_mfma_f32_16x16x32_bf16 v[{acc}:{acc+3}], v[{A}:{A+3}], v[{Q+4*u}:{Q+4*u+3}], {C}')
    a.label('K2_at_vchk')
    a('s_waitcnt vmcnt(0)')
    maxchk(a, range(VM, VM+16), 233)
    a('s_cbranch_vccnz K2_at_vret')
    stamp(a, 3)
    m_, t_ = 232, 233
    a(f'v_max3_f32 v{m_}, v{S}, v{S+1}, v{S+2}')
    for i in range(3, 11, 2):
        a(f'v_max3_f32 v{m_}, v{m_}, v{S+i}, v{S+i+1}')
    a(f'v_max_f32 v{m_}, v{m_}, v{S+11}')
    for sw in ('32', '16'):
        a(f'v_mov_b32 v{t_}, v{m_}')
        a('s_nop 1')
        a(f'v_permlane{sw}_swap_b32 v{m_}, v{t_}')
        a(f'v_max_f32 v{m_}, v{m_}, v{t_}')
    a(f'v_mul_f32 v{m_}, s28, v{m_}')
    for i in range(12):
        a(f'v_fma_f32 v{S+i}, v{S+i}, s28, -v{m_}')
    for i in range(12):
        a(f'v_exp_f32 v{S+i}, v{S+i}')
    for i in range(6):
        a(f'v_cvt_pk_bf16_f32 v{P+i}, v{S+2*i}, v{S+2*i+1}')
    a('s_nop 1')
    stamp(a, 2)
    for ct in range(8):
        a(f'v_mfma_f32_16x16x32_bf16 v[{O+4*ct}:{O+4*ct+3}], v[{VX+4*ct}:{VX+4*ct+3}], v[{P}:{P+3}], 0')
    for ct in range(8):
        a(f'v_mfma_f32_16x16x16_bf16 v[{O+4*ct}:{O+4*ct+3}], v[{VM+2*ct}:{VM+2*ct+1}], v[{P+4}:{P+5}], v[{O+4*ct}:{O+4*ct+3}]')
    l_ = 234
    a(f'v_add_f32 v{l_}, v{S}, v{S+1}')
    for i in range(2, 12):
        a(f'v_add_f32 v{l_}, v{l_}, v{S+i}')
    for u2 in range(4):
        for hh in range(2):
            o = O + 4*(2*u2+hh)
            a(f'v_cvt_pk_bf16_f32 v{OB+4*u2+2*hh}, v{o}, v{o+1}')
            a(f'v_cvt_pk_bf16_f32 v{OB+4*u2+2*hh+1}, v{o+2}, v{o+3}')
        if u2 >= 1:
            uu = u2 - 1
            for tile in range(2):
                C = '0' if uu == 0 else f'v[{RR+4*tile}:{RR+4*tile+3}]'
                a(f'v_mfma_f32_16x16x32_bf16 v[{RR+4*tile}:{RR+4*tile+3}], v[{WO+(tile*4+uu)*4}:{WO+(tile*4+uu)*4+3}], v[{OB+4*uu}:{OB+4*uu+3}], {C}')
    a(f'v_mov_b32 v{t_}, v{l_}')
    a('s_nop 0')
    for tile in range(2):
        a(f'v_mfma_f32_16x16x32_bf16 v[{RR+4*tile}:{RR+4*tile+3}], v[{WO+(tile*4+3)*4}:{WO+(tile*4+3)*4+3}], v[{OB+12}:{OB+15}], v[{RR+4*tile}:{RR+4*tile+3}]')
    a(f'v_permlane32_swap_b32 v{l_}, v{t_}')
    a(f'v_add_f32 v{l_}, v{l_}, v{t_}')
    a(f'v_mov_b32 v{t_}, v{l_}')
    a('s_nop 1')
    a(f'v_permlane16_swap_b32 v{l_}, v{t_}')
    a(f'v_add_f32 v{l_}, v{l_}, v{t_}')
    a(f'v_rcp_f32 v{l_}, v{l_}')
    a('s_nop 1')
    for r in range(8):
        a(f'v_mul_f32 v{RR+r}, v{RR+r}, v{l_}')
    a(f'ds_write_b128 v229, v[{RR}:{RR+3}]')
    a(f'ds_write_b128 v230, v[{RR+4}:{RR+7}]')
    a('s_waitcnt lgkmcnt(0)')
    stamp(a, 4)
    a('s_barrier')
    flush(a)
    a('s_add_u32 s43, s43, 1')
    a('s_cmp_ge_u32 s43, 63')
    a('s_cbranch_scc1 K2_done')
    a('s_add_u32 s26, s26, 131072')
    a('s_add_u32 s27, s27, 65536')
    a('s_barrier')
    prefetch()
    a('s_branch K2_at_loop')
    a.label('K2_at_ret')
    a('s_sub_u32 s44, s44, 1')
    a('s_cbranch_scc1 K2_done')
    a('s_waitcnt vmcnt(0)')
    ld_qk()
    ld_vm()
    a('s_branch K2_at_chk')
    a.label('K2_at_vret')
    a('s_sub_u32 s44, s44, 1')
    a('s_cbranch_scc1 K2_done')
    ld_vm()
    a('s_branch K2_at_vchk')
    a.label('K2_done')
    a('s_endpgm')
    return name, dict(vgpr=256, grid=256, block=512, lds=81920)
```

```python
from fw import *
from chain16 import CEXP
def gen_k3(a):
    name = 'attn_kernel'
    kernel_begin(a, name)
    a('s_cmp_ge_u32 s2, 512')
    a('s_cbranch_scc1 K3_done')
    a(f's_load_dwordx2 s[6:7], s[0:1], {KA["ws"]}')
    a('v_lshrrev_b32 v1, 6, v0')
    a('s_nop 0')
    a('v_readfirstlane_b32 s33, v1')
    a('s_lshl_b32 s3, s2, 2')
    a('s_add_u32 s3, s3, s33')
    a('s_lshr_b32 s34, s3, 5')
    a('s_and_b32 s35, s3, 31')
    QQ, KK, QM, VX, VM, S, P, O, BI, CB = 0, 32, 64, 80, 112, 128, 140, 148, 180, 184
    L = 190
    a(f'v_and_b32 v{L}, 63, v0')
    a(f'v_lshlrev_b32 v{L+1}, 4, v{L}')
    a(f'v_add_u32 v{L+2}, 0x20000, v{L+1}')
    a(f'v_add_u32 v{L+3}, 4096, v{L+1}')
    a(f'v_and_b32 v{L+4}, 31, v{L}')
    a(f'v_lshlrev_b32 v{L+4}, 4, v{L+4}')
    a('s_waitcnt lgkmcnt(0)')
    srd(a, 8, 6, QF, 0x1000000)
    srd(a, 12, 6, KF, 0x1000000)
    srd(a, 16, 6, VF, 0x1000000)
    srd(a, 20, 6, CQK, 64*32*4096)
    srd(a, 24, 6, CV, 64*32*2048)
    srd(a, 28, 6, OF, 0x1000000)
    a('s_lshl_b32 s36, s34, 18')
    a('s_lshl_b32 s37, s35, 12')
    a('s_add_u32 s36, s36, s37')
    a('s_lshl_b32 s38, s3, 13')
    a('s_lshl_b32 s39, s3, 12')
    a('s_lshl_b32 s40, s3, 11')
    a(f's_mov_b32 s41, 0x{CEXP:x}')
    for r in range(16):
        a(f'v_mov_b32 v{VM+r}, 0')
    for t in range(2):
        for u in range(4):
            r = QQ + (t*4+u)*4
            a(f'buffer_load_dwordx4 v[{r}:{r+3}], v{L+1+t}, s[8:11], s36 offen offset:{u*1024}')
    for u in range(4):
        a(f'buffer_load_dwordx4 v[{QM+4*u}:{QM+4*u+3}], v{L+1}, s[20:23], s39 offen offset:{u*1024}')
    for t in range(2):
        for u in range(4):
            r = KK + (t*4+u)*4
            a(f'buffer_load_dwordx4 v[{r}:{r+3}], v{L+1+t}, s[12:15], s36 offen offset:{u*1024}')
    for ct in range(8):
        a(f'buffer_load_dwordx4 v[{VX+4*ct}:{VX+4*ct+3}], v{L+1 if ct < 4 else L+3}, s[16:19], s38 offen offset:{(ct%4)*1024}')
    a('s_mov_b32 exec_lo, 0')
    for u in range(4):
        a(f'buffer_load_dwordx4 v[{VM+4*u}:{VM+4*u+3}], v{L+4}, s[24:27], s40 offen offset:{u*512}')
    a('s_mov_b32 exec_lo, -1')
    t0, t1, t2 = L+5, L+6, L+7
    a(f'v_mov_b32 v{t0}, 0xf149f2ca')
    a(f'v_cmp_gt_u32 vcc, 32, v{L}')
    a('s_nop 1')
    for r in range(4):
        a(f'v_cndmask_b32 v{BI+r}, 0, v{t0}, vcc')
    a(f'v_lshrrev_b32 v{t1}, 4, v{L}')
    a(f'v_lshlrev_b32 v{t1}, 2, v{t1}')
    a(f'v_and_b32 v{t2}, 15, v{L}')
    for r in range(4):
        a(f'v_add_u32 v{CB+r}, {r}, v{t1}')
        a(f'v_cmp_gt_u32 vcc, v{CB+r}, v{t2}')
        a('s_nop 1')
        a(f'v_cndmask_b32 v{CB+r}, 0, v{t0}, vcc')
    a('s_waitcnt vmcnt(12)')
    m_, t_, l_ = L+5, L+6, L+7
    for qt in range(2):
        nt = 2 if qt == 0 else 3
        tiles = [0, 2] if qt == 0 else [0, 1, 2]
        for u in range(4):
            for t3 in tiles:
                A = (KK + (t3*4+u)*4) if t3 < 2 else QM + 4*u
                acc = S + 4*t3
                if u == 0:
                    C = f'v[{BI}:{BI+3}]' if t3 == 2 else (f'v[{CB}:{CB+3}]' if t3 == qt else '0')
                else:
                    C = f'v[{acc}:{acc+3}]'
                B = QQ + (qt*4+u)*4
                a(f'v_mfma_f32_16x16x32_bf16 v[{acc}:{acc+3}], v[{A}:{A+3}], v[{B}:{B+3}], {C}')
        a('s_nop 7')
        regs = [S+4*t3+r for t3 in tiles for r in range(4)]
        a(f'v_max3_f32 v{m_}, v{regs[0]}, v{regs[1]}, v{regs[2]}')
        i = 3
        while i + 1 < len(regs):
            a(f'v_max3_f32 v{m_}, v{m_}, v{regs[i]}, v{regs[i+1]}'); i += 2
        a(f'v_max_f32 v{m_}, v{m_}, v{regs[i]}')
        for sw in ('32', '16'):
            a(f'v_mov_b32 v{t_}, v{m_}')
            a('s_nop 1')
            a(f'v_permlane{sw}_swap_b32 v{m_}, v{t_}')
            a(f'v_max_f32 v{m_}, v{m_}, v{t_}')
        a(f'v_mul_f32 v{m_}, s41, v{m_}')
        for r in regs:
            a(f'v_fma_f32 v{r}, v{r}, s41, -v{m_}')
        for r in regs:
            a(f'v_exp_f32 v{r}, v{r}')
        for t3 in range(3):
            if t3 in tiles:
                a(f'v_cvt_pk_bf16_f32 v{P+2*t3}, v{S+4*t3}, v{S+4*t3+1}')
                a(f'v_cvt_pk_bf16_f32 v{P+2*t3+1}, v{S+4*t3+2}, v{S+4*t3+3}')
            else:
                a(f'v_mov_b32 v{P+2*t3}, 0')
                a(f'v_mov_b32 v{P+2*t3+1}, 0')
        a('s_waitcnt vmcnt(0)')
        a('s_nop 0')
        for ct in range(8):
            a(f'v_mfma_f32_16x16x32_bf16 v[{O+4*ct}:{O+4*ct+3}], v[{VX+4*ct}:{VX+4*ct+3}], v[{P}:{P+3}], 0')
        for ct in range(8):
            a(f'v_mfma_f32_16x16x16_bf16 v[{O+4*ct}:{O+4*ct+3}], v[{VM+2*ct}:{VM+2*ct+1}], v[{P+4}:{P+5}], v[{O+4*ct}:{O+4*ct+3}]')
        a(f'v_add_f32 v{l_}, v{regs[0]}, v{regs[1]}')
        for r in regs[2:]:
            a(f'v_add_f32 v{l_}, v{l_}, v{r}')
        for sw in ('32', '16'):
            a(f'v_mov_b32 v{t_}, v{l_}')
            a('s_nop 1')
            a(f'v_permlane{sw}_swap_b32 v{l_}, v{t_}')
            a(f'v_add_f32 v{l_}, v{l_}, v{t_}')
        a(f'v_rcp_f32 v{l_}, v{l_}')
        a('s_nop 0')
        for u2 in range(4):
            for r in range(8):
                a(f'v_mul_f32 v{O+8*u2+r}, v{O+8*u2+r}, v{l_}')
            for p in range(4):
                a(f'v_cvt_pk_bf16_f32 v{O+8*u2+p}, v{O+8*u2+2*p}, v{O+8*u2+2*p+1}')
            a(f'buffer_store_dwordx4 v[{O+8*u2}:{O+8*u2+3}], v{L+1+qt}, s[28:31], s36 offen offset:{u2*1024}')
        a('s_nop 1')
    a.label('K3_done')
    a('s_endpgm')
    return name, dict(vgpr=200, grid=512, block=256, lds=0)
```

```python
from fw import *
AS, AG = 0, 80
TF = 160
WFR = 192
VD = 212
AW = 217
VL = 218
VT = 219
NST = 4

def gemm_part(a, tag, acc, nsteps_sreg, tok_srd, w_srd, s_tok, s_w):
    def dmaW(st):
        for j in range(5):
            a(f's_add_u32 m0, s34, {st*5120 + j*1024}')
            a('s_nop 0')
            a(f'buffer_load_dwordx4 v{VD+j}, s[{w_srd}:{w_srd+3}], s{s_w} offen lds')
        a(f's_add_u32 s{s_w}, s{s_w}, {32*1280}')
    def ldT(b):
        for i in range(4):
            a(f'buffer_load_dwordx4 v[{TF+16*b+4*i}:{TF+16*b+4*i+3}], v{VT+i}, s[{tok_srd}:{tok_srd+3}], s{s_tok} offen')
        a(f's_add_u32 s{s_tok}, s{s_tok}, 1024')
    dmaW(0); ldT(0); dmaW(1); dmaW(2)
    for r in range(80):
        a(f'v_mov_b32 v{acc+r}, 0')
    a(f's_mov_b32 s45, 0')
    a.label(f'K4_loop{tag}')
    for ph in range(4):
        st, b = ph, ph % 2
        ldT(b ^ 1)
        dmaW((st+3) % 4)
        a('s_waitcnt vmcnt(14)')
        for c in range(5):
            a(f'ds_read_b64_tr_b16 v[{WFR+4*c}:{WFR+4*c+1}], v{AW} offset:{st*5120 + 32*c}')
            a(f'ds_read_b64_tr_b16 v[{WFR+4*c+2}:{WFR+4*c+3}], v{AW} offset:{st*5120 + 32*c + 2560}')
        for c in range(5):
            a(f's_waitcnt lgkmcnt({8-2*c})')
            for i in range(4):
                ac = acc + (i*5+c)*4
                a(f'v_mfma_f32_16x16x32_bf16 v[{ac}:{ac+3}], v[{WFR+4*c}:{WFR+4*c+3}], v[{TF+16*b+4*i}:{TF+16*b+4*i+3}], v[{ac}:{ac+3}]')
        a('s_add_u32 s45, s45, 1')
        a(f's_cmp_ge_u32 s45, s{nsteps_sreg}')
        a(f's_cbranch_scc1 K4_end{tag}')
    a(f's_branch K4_loop{tag}')
    a.label(f'K4_end{tag}')
    a('s_waitcnt vmcnt(0)')

def gen_k4(a):
    name = 'final_kernel'
    kernel_begin(a, name)
    a('s_cmp_ge_u32 s2, 256')
    a('s_cbranch_scc1 K4_done')
    a(f's_load_dwordx2 s[4:5], s[0:1], {KA["x"]}')
    a(f's_load_dwordx2 s[6:7], s[0:1], {KA["Wo"]}')
    a(f's_load_dwordx4 s[48:51], s[0:1], {KA["w2"]}')
    a(f's_load_dwordx2 s[52:53], s[0:1], {KA["out"]}')
    a(f's_load_dwordx2 s[54:55], s[0:1], {KA["ws"]}')
    a('v_lshrrev_b32 v1, 6, v0')
    a('s_nop 0')
    a('v_readfirstlane_b32 s33, v1')
    a('s_and_b32 s35, s2, 7')
    a('s_lshr_b32 s36, s2, 3')
    a('v_and_b32 v1, 63, v0')
    a(f'v_lshlrev_b32 v{VL}, 4, v1')
    a('s_mul_i32 s3, s35, 160')
    a('s_mov_b32 s37, 0x1999999a')
    for j in range(5):
        a(f'v_add_u32 v2, {64*j}, v1')
        a('v_mul_hi_u32 v3, v2, s37')
        a('v_mul_u32_u24 v4, 10, v3')
        a('v_sub_u32 v4, v2, v4')
        a('v_mul_u32_u24 v3, 1280, v3')
        a('v_lshl_add_u32 v3, v4, 4, v3')
        a(f'v_add_u32 v{VD+j}, s3, v3')
    a('s_mul_i32 s34, s33, 20480')
    a('v_lshrrev_b32 v2, 2, v1')
    a('v_mul_u32_u24 v2, 160, v2')
    a('v_and_b32 v3, 3, v1')
    a('v_lshl_add_u32 v2, v3, 3, v2')
    a(f'v_add_u32 v{AW}, s34, v2')
    a('s_waitcnt lgkmcnt(0)')
    srd(a, 8, 6, 0, 4096*1280)
    srd(a, 12, 48, 0, 1728*1280)
    srd(a, 16, 54, OF, 0x1000000)
    srd(a, 20, 54, HF, 128*54*1024)
    for i in range(4):
        a(f'v_add_u32 v{VT+i}, {i*131072}, v{VL}')
    a('s_lshl_b32 s40, s36, 19')
    a('s_lshl_b32 s3, s33, 15')
    a('s_add_u32 s40, s40, s3')
    a('s_mul_i32 s41, s33, 32*32*1280')
    a('s_mov_b32 s42, 32')
    gemm_part(a, 'S', AS, 42, 16, 8, 40, 41)
    for i in range(4):
        a(f'v_add_u32 v{VT+i}, {i*54*1024}, v{VL}')
    a('s_mul_i32 s3, s33, 13')
    a('s_min_u32 s43, s33, 2')
    a('s_add_u32 s3, s3, s43')
    a('s_mul_i32 s40, s36, 4*54*1024')
    a('s_lshl_b32 s43, s3, 10')
    a('s_add_u32 s40, s40, s43')
    a('s_mul_i32 s41, s3, 32*1280')
    a('s_cmp_lt_u32 s33, 2')
    a('s_cselect_b32 s42, 14, 13')
    gemm_part(a, 'G', AG, 42, 20, 12, 40, 41)
    a('s_nop 7')
    a('s_barrier')
    for i in range(4):
        a(f's_cmp_eq_u32 s33, {i}')
        a(f's_cbranch_scc1 K4_skipw{i}')
        a(f's_cmp_gt_u32 s33, {i}')
        a('s_cselect_b32 s3, 1, 0')
        a('s_sub_u32 s3, s33, s3')
        a(f's_add_u32 s3, s3, {3*i}')
        a('s_mul_i32 s3, s3, 10240')
        a(f'v_add_u32 v{TF}, s3, v{VL}')
        for gm in range(2):
            for c in range(5):
                ac = (AS if gm == 0 else AG) + (i*5+c)*4
                a(f'ds_write_b128 v{TF}, v[{ac}:{ac+3}] offset:{(gm*5+c)*1024}')
        a.label(f'K4_skipw{i}')
    a('s_waitcnt lgkmcnt(0)')
    a('s_barrier')
    for i in range(4):
        a(f's_cmp_lg_u32 s33, {i}')
        a(f's_cbranch_scc1 K4_mv{i}')
        for r in range(20):
            a(f'v_mov_b32 v{160+r}, v{AS+i*20+r}')
            a(f'v_mov_b32 v{180+r}, v{AG+i*20+r}')
        a.label(f'K4_mv{i}')
    a('s_mul_i32 s3, s33, 30720')
    a(f'v_add_u32 v{200}, s3, v{VL}')
    for j in range(3):
        for f in range(10):
            a(f'ds_read_b128 v[{(j*10+f)*4}:{(j*10+f)*4+3}], v200 offset:{(j*10+f)*1024}')
    srd(a, 24, 4, 0, 2048*1280)
    srd(a, 28, 52, 0, 2048*1280)
    srd(a, 44, 50, 0, 1280)
    a(f'v_lshrrev_b32 v201, 4, v{VL}')
    a('v_and_b32 v202, 15, v201')
    a('v_lshrrev_b32 v203, 4, v201')
    a('v_lshlrev_b32 v203, 3, v203')
    a('v_mul_u32_u24 v202, 1280, v202')
    a('v_add_u32 v202, v202, v203')
    a('s_lshl_b32 s3, s36, 2')
    a('s_add_u32 s3, s3, s33')
    a('s_mul_i32 s3, s3, 20480')
    a('s_mul_i32 s37, s35, 160')
    a('s_add_u32 s3, s3, s37')
    for c in range(5):
        a(f'buffer_load_dwordx2 v[{204+2*c}:{205+2*c}], v202, s[24:27], s3 offen offset:{32*c}')
    for c in range(5):
        a(f'buffer_load_dwordx2 v[{214+2*c}:{215+2*c}], v203, s[44:47], s37 offen offset:{32*c}')
    a('s_waitcnt lgkmcnt(0)')
    for j in range(3):
        for r in range(40):
            a(f'v_add_f32 v{160+r}, v{160+r}, v{j*40+r}')
    a('s_waitcnt vmcnt(0)')
    x0, x1, y0, y1, t = 0, 1, 2, 3, 4
    for c in range(5):
        for p in range(2):
            S0, G0 = 160+4*c+2*p, 180+4*c+2*p
            a(f'v_cvt_pk_bf16_f32 v{t}, v{G0}, v{G0+1}')
            a(f'v_lshlrev_b32 v{x0}, 16, v{t}')
            a(f'v_and_b32 v{x1}, 0xffff0000, v{t}')
            a(f'v_lshlrev_b32 v{y0}, 16, v{214+2*c+p}')
            a(f'v_and_b32 v{y1}, 0xffff0000, v{214+2*c+p}')
            a(f'v_add_f32 v{x0}, v{x0}, v{y0}')
            a(f'v_add_f32 v{x1}, v{x1}, v{y1}')
            a(f'v_cvt_pk_bf16_f32 v{t}, v{x0}, v{x1}')
            a(f'v_lshlrev_b32 v{x0}, 16, v{t}')
            a(f'v_and_b32 v{x1}, 0xffff0000, v{t}')
            a(f'v_mul_f32 v{y0}, 0xbfb8aa3b, v{x0}')
            a(f'v_mul_f32 v{y1}, 0xbfb8aa3b, v{x1}')
            a(f'v_exp_f32 v{y0}, v{y0}')
            a(f'v_exp_f32 v{y1}, v{y1}')
            a('s_nop 0')
            a(f'v_add_f32 v{y0}, 1.0, v{y0}')
            a(f'v_add_f32 v{y1}, 1.0, v{y1}')
            a(f'v_rcp_f32 v{y0}, v{y0}')
            a(f'v_rcp_f32 v{y1}, v{y1}')
            a('s_nop 0')
            a(f'v_mul_f32 v{x0}, v{x0}, v{y0}')
            a(f'v_mul_f32 v{x1}, v{x1}, v{y1}')
            a(f'v_cvt_pk_bf16_f32 v{t}, v{x0}, v{x1}')
            a(f'v_lshlrev_b32 v{x0}, 16, v{t}')
            a(f'v_and_b32 v{x1}, 0xffff0000, v{t}')
            a(f'v_cvt_pk_bf16_f32 v{t}, v{S0}, v{S0+1}')
            a(f'v_lshlrev_b32 v{y0}, 16, v{t}')
            a(f'v_and_b32 v{y1}, 0xffff0000, v{t}')
            a(f'v_mul_f32 v{x0}, v{x0}, v{y0}')
            a(f'v_mul_f32 v{x1}, v{x1}, v{y1}')
            a(f'v_cvt_pk_bf16_f32 v{t}, v{x0}, v{x1}')
            a(f'v_lshlrev_b32 v{x0}, 16, v{t}')
            a(f'v_and_b32 v{x1}, 0xffff0000, v{t}')
            a(f'v_lshlrev_b32 v{y0}, 16, v{204+2*c+p}')
            a(f'v_and_b32 v{y1}, 0xffff0000, v{204+2*c+p}')
            a(f'v_add_f32 v{x0}, v{x0}, v{y0}')
            a(f'v_add_f32 v{x1}, v{x1}, v{y1}')
            a(f'v_cvt_pk_bf16_f32 v{8+2*c+p}, v{x0}, v{x1}')
        a(f'buffer_store_dwordx2 v[{8+2*c}:{9+2*c}], v202, s[28:31], s3 offen offset:{32*c}')
    a.label('K4_done')
    a('s_endpgm')
    return name, dict(vgpr=224, grid=256, block=256, lds=122880)
```

```python
import sys
from fw import *
from k0 import gen_k0
from k1 import gen_k1
HEADER = open('recurrent_scan__memory_aug_recurrent_mem_tr__dense_activation_squared_relu__prompt.s.ref').read().split('; Override launch')[0]
def build(gens, out):
    a = Asm()
    infos = []
    for g in gens:
        infos.append(g(a))
    for name, inf in infos:
        kernel_desc(a, name, inf['vgpr'], accum=inf.get('accum'))
    txt = HEADER
    for name, inf in infos:
        txt += f"; @launch kernel={name} grid=({inf['grid']},1,1) block=({inf['block']},1,1) lds={inf['lds']}\n"
    txt += '.amdgcn_target "amdgcn-amd-amdhsa--gfx950"\n' + a.text()
    open(out, 'w').write(txt)
if __name__ == '__main__':
    gens = [gen_k0, gen_k1]
    try:
        from chain16 import gen_k2
        gens.append(gen_k2)
        from k3 import gen_k3
        gens.append(gen_k3)
        from k4 import gen_k4
        gens.append(gen_k4)
    except ImportError as e:
        print('partial:', e)
    build(gens, sys.argv[1] if len(sys.argv) > 1 else 'recurrent_scan__memory_aug_recurrent_mem_tr__dense_activation_squared_relu__prompt.s')
```

```python
from fw import *
def gen_k0(a):
    name = 'ln_init_kernel'
    kernel_begin(a, name)
    a('s_cmp_ge_u32 s2, 136')
    a('s_cbranch_scc1 K0_done')
    a(f's_load_dwordx2 s[4:5], s[0:1], {KA["x"]}')
    a(f's_load_dwordx2 s[6:7], s[0:1], {KA["mem0"]}')
    a(f's_load_dwordx2 s[8:9], s[0:1], {KA["ws"]}')
    a('s_waitcnt lgkmcnt(0)')
    a('v_lshlrev_b32 v1, 4, v0')
    a('s_cmp_lt_u32 s2, 128')
    a('s_cbranch_scc1 K0_ln')
    a('s_cmp_ge_u32 s2, 136')
    a('s_cbranch_scc1 K0_done')
    srd(a, 16, 6, 0, 10240)
    a('s_sub_u32 s3, s2, 128')
    a('s_mul_i32 s3, s3, 10240')
    a(f's_add_u32 s3, s3, 0x{MEMB:x}')
    a('s_add_u32 s20, s8, s3')
    a('s_addc_u32 s21, s9, 0')
    a('s_mov_b32 s22, 10240')
    a('s_mov_b32 s23, 0x20000')
    a('v_and_b32 v20, 7, v0')
    a('v_mul_u32_u24 v20, 1280, v20')
    a('v_bfe_u32 v21, v0, 3, 1')
    a('v_lshl_add_u32 v20, v21, 6, v20')
    a('v_bfe_u32 v21, v0, 4, 2')
    a('v_lshl_add_u32 v20, v21, 4, v20')
    a('v_lshrrev_b32 v21, 6, v0')
    a('v_lshl_add_u32 v20, v21, 7, v20')
    for j in range(3):
        a(f'buffer_load_dwordx4 v[{8+4*j}:{11+4*j}], v20, s[16:19], 0 offen offset:{512*j}')
    a('v_add_u32 v3, 4096, v1')
    a('v_add_u32 v4, 8192, v1')
    a('s_waitcnt vmcnt(0)')
    for r in range(8, 20):
        a(f'v_min_u32 v{r}, -2, v{r}')
    a('buffer_store_dwordx4 v[8:11], v1, s[20:23], 0 offen')
    a('buffer_store_dwordx4 v[12:15], v3, s[20:23], 0 offen')
    a('buffer_store_dwordx4 v[16:19], v4, s[20:23], 0 offen')
    a('s_branch K0_done')
    a.label('K0_ln')
    srd(a, 16, 4, 0, 2048*1280)
    srd(a, 20, 8, XNF, 128*20*1024)
    a('v_and_b32 v1, 63, v0')
    a('v_lshrrev_b32 v2, 6, v0')
    a('v_and_b32 v3, 15, v1')
    a('v_lshrrev_b32 v4, 4, v1')
    a('v_mul_u32_u24 v5, 1280, v3')
    a('v_lshl_add_u32 v5, v4, 3, v5')
    a('v_mul_u32_u24 v6, 320, v2')
    a('v_add_u32 v5, v5, v6')
    a('s_mul_i32 s3, s2, 20480')
    for kk in range(5):
        a(f'buffer_load_dwordx2 v[{10+4*kk}:{11+4*kk}], v5, s[16:19], s3 offen offset:{64*kk}')
        a(f'buffer_load_dwordx2 v[{12+4*kk}:{13+4*kk}], v5, s[16:19], s3 offen offset:{64*kk+32}')
    a('v_lshlrev_b32 v7, 6, v3')
    a('v_lshl_add_u32 v8, v2, 4, v7')
    a('v_lshl_add_u32 v8, v4, 2, v8')
    a('s_waitcnt vmcnt(0)')
    for i in range(20):
        a(f'v_lshlrev_b32 v{32+2*i}, 16, v{10+i}')
        a(f'v_and_b32 v{33+2*i}, 0xffff0000, v{10+i}')
    a('v_add_f32 v9, v32, v33')
    for i in range(34, 72):
        a(f'v_add_f32 v9, v9, v{i}')
    a('ds_write_b32 v8, v9')
    a('s_waitcnt lgkmcnt(0)')
    a('s_barrier')
    for j in range(4):
        a(f'ds_read_b128 v[{72+4*j}:{75+4*j}], v7 offset:{16*j}')
    a('s_waitcnt lgkmcnt(0)')
    a('v_add_f32 v9, v72, v73')
    for i in range(74, 88):
        a(f'v_add_f32 v9, v9, v{i}')
    a('v_mul_f32 v9, 0x3acccccd, v9')
    a('v_sub_f32 v30, v32, v9')
    a('v_mul_f32 v31, v30, v30')
    for i in range(33, 72):
        a(f'v_sub_f32 v30, v{i}, v9')
        a('v_fmac_f32 v31, v30, v30')
    a('ds_write_b32 v8, v31 offset:1024')
    a('s_waitcnt lgkmcnt(0)')
    a('s_barrier')
    for j in range(4):
        a(f'ds_read_b128 v[{72+4*j}:{75+4*j}], v7 offset:{1024+16*j}')
    a('s_waitcnt lgkmcnt(0)')
    a('v_add_f32 v31, v72, v73')
    for i in range(74, 88):
        a(f'v_add_f32 v31, v31, v{i}')
    a('v_mul_f32 v31, 0x3acccccd, v31')
    a('v_cvt_pk_bf16_f32 v30, v9, v31')
    a('v_lshlrev_b32 v9, 16, v30')
    a('v_and_b32 v31, 0xffff0000, v30')
    a('v_add_f32 v31, 0x3727c5ac, v31')
    a('v_cvt_pk_bf16_f32 v30, v31, v31')
    a('v_lshlrev_b32 v31, 16, v30')
    a('v_sqrt_f32 v31, v31')
    a('s_nop 0')
    a('v_cvt_pk_bf16_f32 v30, v31, v31')
    a('v_lshlrev_b32 v31, 16, v30')
    a('v_rcp_f32 v31, v31')
    a('s_nop 0')
    for i in range(20):
        a(f'v_sub_f32 v72, v{32+2*i}, v9')
        a(f'v_sub_f32 v73, v{33+2*i}, v9')
        a('v_cvt_pk_bf16_f32 v74, v72, v73')
        a('v_lshlrev_b32 v72, 16, v74')
        a('v_and_b32 v73, 0xffff0000, v74')
        a('v_mul_f32 v72, v72, v31')
        a('v_mul_f32 v73, v73, v31')
        a(f'v_cvt_pk_bf16_f32 v{10+i}, v72, v73')
    a('v_mul_u32_u24 v6, 5120, v2')
    a('v_lshl_add_u32 v6, v1, 4, v6')
    for kk in range(5):
        if kk < 4:
            a(f'buffer_store_dwordx4 v[{10+4*kk}:{13+4*kk}], v6, s[20:23], s3 offen offset:{1024*kk}')
        else:
            a('v_add_u32 v6, 4096, v6')
            a(f'buffer_store_dwordx4 v[{10+4*kk}:{13+4*kk}], v6, s[20:23], s3 offen')
    a.label('K0_done')
    a('s_endpgm')
    return name, dict(vgpr=88, grid=136, block=256, lds=2048)
```

```python
from fw import *
import os
ACC = 0
WF = 128
TF = 160
AW = 176
AT = 192
VW = 194
VT = 196
VL = 197
VR = 198
TMP = 128
NK = 20
class A2:
    def __init__(s, a): s.a = a
    def __call__(s, t):
        if os.environ.get('NOEPI') and t.startswith('buffer_store'): return
        if os.environ.get('K1NODMA') and ' lds' in t: return
        s.a(t)
    def label(s, n): s.a.label(n)
    @property
    def lines(s): return s.a.lines

def dma_one(a, k, j):
    st = k % 4
    if j < 2:
        a(f's_add_u32 m0, s34, {st*32768 + j*1024}')
        a('s_nop 0')
        a(f'buffer_load_dwordx4 v{VW+j}, s[12:15], s31 offen lds')
        if j == 1: a('s_add_u32 s31, s31, s37')
    else:
        a(f's_add_u32 m0, s35, {st*32768 + (j-2)*1024}')
        a('s_nop 0')
        a(f'buffer_load_dwordx4 v{VT}, s[16:19], s{32 if j == 2 else 36} offen lds')
        a(f's_add_u32 s{32 if j == 2 else 36}, s{32 if j == 2 else 36}, 1024')

def prologue(a):
    for k in range(3):
        for j in range(4):
            dma_one(a, k, j)

TF2 = 200
def mainloop(a, isV, extra):
    q = []
    def tb(k): return TF if k % 2 == 0 else TF2
    def rdT(k, i):
        st = k % 4
        a(f'ds_read_b128 v[{tb(k)+4*i}:{tb(k)+4*i+3}], v{AT+(1 if st >= 2 else 0)} offset:{(st%2)*32768+i*1024}')
        q.append(('T', k, i))
    def rdW(k, c):
        st = k % 4
        ad = AW + (8 if st >= 2 else 0) + c
        so = (st % 2) * 32768
        a(f'ds_read_b64_tr_b16 v[{WF+4*c}:{WF+4*c+1}], v{ad} offset:{so}')
        a(f'ds_read_b64_tr_b16 v[{WF+4*c+2}:{WF+4*c+3}], v{ad} offset:{so+8192}')
        q.append(('W', k, c)); q.append(('W', k, c))
    def need(tags):
        idx = [i for i, t in enumerate(q) if t in tags]
        if idx:
            last = max(idx)
            a(f's_waitcnt lgkmcnt({min(15, len(q) - 1 - last)})')
            del q[:last+1]
    def sync(k):
        if k == 0:
            n = 8 + extra
        else:
            issued = min(NK-1, max(2, k+1))
            n = 4*(issued - k) + (extra if k < 3 else 0)
        a(f's_waitcnt vmcnt({n})')
        a('s_barrier')
    sync(0)
    rdT(0, 0); rdW(0, 0); rdT(0, 1); rdT(0, 2); rdT(0, 3); rdW(0, 1); rdW(0, 2); rdW(0, 3)
    for k in range(NK):
        for c in range(8):
            if c == 4 and k + 1 < NK:
                sync(k+1)
            for i in range(4):
                need([('W', k, c), ('T', k, i)])
                acc = ACC + (c*4+i)*4
                A, B = (WF+4*c, tb(k)+4*i) if not isV else (tb(k)+4*i, WF+4*c)
                C = '0' if k == 0 else f'v[{acc}:{acc+3}]'
                a(f'v_mfma_f32_16x16x32_bf16 v[{acc}:{acc+3}], v[{A}:{A+3}], v[{B}:{B+3}], {C}')
                if i == 0 and c < 4:
                    rdW(k, c+4)
                if c >= 4 and k + 1 < NK:
                    if i == 0: rdT(k+1, c-4)
                    if i == 1: rdW(k+1, c-4)
                    if i == 3 and k + 3 < NK:
                        dma_one(a, k+3, c-4)
    a('s_nop 7')
    a('s_nop 1')

def tile_setup(a, idreg):
    a(f's_and_b32 s3, s{idreg}, 7')
    a(f's_lshr_b32 s28, s{idreg}, 3')
    a('s_lshr_b32 s29, s28, 3')
    a('s_and_b32 s28, s28, 7')
    a('s_lshl_b32 s29, s29, 3')
    a('s_add_u32 s29, s29, s3')
    a('s_lshr_b32 s38, s29, 4')
    a('s_cmp_eq_u32 s38, 0')
    a('s_cselect_b32 s12, s40, s42'); a('s_cselect_b32 s13, s41, s43')
    a('s_cmp_eq_u32 s38, 2')
    a('s_cselect_b32 s12, s44, s12'); a('s_cselect_b32 s13, s45, s13')
    a('s_cmp_eq_u32 s38, 3')
    a('s_cselect_b32 s12, s48, s12'); a('s_cselect_b32 s13, s49, s13')
    a('s_mov_b32 s30, 8192'); a('s_cmov_b32 s30, 3456')
    a(f's_mov_b32 s14, {640*8192}'); a(f's_cmov_b32 s14, {640*3456}')
    a('s_mov_b32 s15, 0x20000')
    a('s_and_b32 s39, s29, 15')
    a('s_lshl_b32 s46, s39, 9')
    a('s_lshl_b32 s37, s30, 5')
    a('s_mov_b32 s31, 0')
    a('s_mul_i32 s32, s28, 16*20*1024')
    a('s_add_u32 s36, s32, 20480')
    for j in range(2):
        a(f'v_mul_lo_u32 v{VW+j}, v{VR+j}, s30')
        a(f'v_add_u32 v{VW+j}, v{VW+j}, v{252+j}')
        a(f'v_add_u32 v{VW+j}, s46, v{VW+j}')

def gen_k1(a):
    a = A2(a)
    name = 'gemm1_kernel'
    kernel_begin(a, name)
    a('s_cmp_ge_u32 s2, 256')
    a('s_cbranch_scc1 K1_done')
    a(f's_load_dwordx4 s[40:43], s[0:1], {KA["Wq"]}')
    a(f's_load_dwordx2 s[44:45], s[0:1], {KA["Wv"]}')
    a(f's_load_dwordx4 s[48:51], s[0:1], {KA["w1"]}')
    a(f's_load_dwordx2 s[6:7], s[0:1], {KA["ws"]}')
    a('v_lshrrev_b32 v1, 6, v0')
    a('s_nop 0')
    a('v_readfirstlane_b32 s33, v1')
    a('s_lshl_b32 s34, s33, 11')
    a('s_add_u32 s35, s34, 16384')
    a('v_and_b32 v1, 63, v0')
    a(f'v_lshlrev_b32 v{VL}, 4, v1')
    a('v_lshrrev_b32 v2, 5, v1')
    a('s_lshl_b32 s47, s33, 2')
    for j in range(2):
        a(f'v_add_u32 v{VR+j}, s47, v2')
        if j: a(f'v_add_u32 v{VR+j}, 2, v{VR+j}')
        a(f'v_and_b32 v4, 7, v{VR+j}')
        a('v_lshlrev_b32 v4, 1, v4')
        a('v_and_b32 v5, 31, v1')
        a('v_xor_b32 v4, v4, v5')
        a(f'v_lshlrev_b32 v{252+j}, 4, v4')
    a('s_mul_i32 s47, s33, 40960')
    a(f'v_add_u32 v{VT}, s47, v{VL}')
    a('s_lshr_b32 s52, s33, 1')
    a('s_and_b32 s53, s33, 1')
    a('s_lshl_b32 s47, s52, 12')
    a('s_add_u32 s47, s47, 16384')
    a(f'v_add_u32 v{AT}, s47, v{VL}')
    a(f'v_add_u32 v{AT+1}, 0x10000, v{AT}')
    a('v_lshrrev_b32 v2, 4, v1')
    a('v_bfe_u32 v3, v1, 2, 2')
    a('v_lshl_add_u32 v4, v2, 2, v3')
    a('v_and_b32 v5, 7, v4')
    a('v_lshlrev_b32 v4, 9, v4')
    a('v_and_b32 v6, 3, v1')
    a('v_lshl_add_u32 v4, v6, 3, v4')
    a('s_lshl_b32 s47, s53, 8')
    a('v_add_u32 v4, s47, v4')
    for c in range(8):
        a(f'v_xor_b32 v6, {c}, v5')
        a(f'v_lshl_add_u32 v{AW+c}, v6, 5, v4')
        a(f'v_add_u32 v{AW+8+c}, 0x10000, v{AW+c}')
    a('s_waitcnt lgkmcnt(0)')
    srd(a, 16, 6, XNF, 128*20*1024)
    tile_setup(a, 2)
    prologue(a)
    mainloop(a, False, 0)
    a('s_cmp_eq_u32 s38, 0')
    a(f's_mov_b32 s47, 0x{KF:x}'); a(f's_cmov_b32 s47, 0x{QF:x}')
    a('s_add_u32 s20, s6, s47'); a('s_addc_u32 s21, s7, 0')
    a('s_mov_b32 s22, 0x1000000'); a('s_mov_b32 s23, 0x20000')
    a('s_lshl_b32 s47, s28, 4')
    a('s_lshl_b32 s54, s52, 2')
    a('s_add_u32 s47, s47, s54')
    a('s_lshl_b32 s47, s47, 5')
    a('s_lshl_b32 s54, s39, 1')
    a('s_add_u32 s54, s54, s53')
    a('s_add_u32 s47, s47, s54')
    a('s_lshl_b32 s47, s47, 12')
    a('s_add_u32 s56, s2, 256')
    tile_setup(a, 56)
    a('s_cmp_ge_u32 s29, 55')
    a('s_cselect_b32 s57, 0, 1')
    a('s_cbranch_scc1 K1_nonext')
    a('s_barrier')
    prologue(a)
    a.label('K1_nonext')
    for i in range(4):
        for u in range(4):
            t = TMP + 4*((i*4+u) % 4)
            a0 = ACC + ((2*u)*4+i)*4
            a1 = ACC + ((2*u+1)*4+i)*4
            a(f'v_cvt_pk_bf16_f32 v{t}, v{a0}, v{a0+1}')
            a(f'v_cvt_pk_bf16_f32 v{t+1}, v{a0+2}, v{a0+3}')
            a(f'v_cvt_pk_bf16_f32 v{t+2}, v{a1}, v{a1+1}')
            a(f'v_cvt_pk_bf16_f32 v{t+3}, v{a1+2}, v{a1+3}')
            a(f'buffer_store_dwordx4 v[{t}:{t+3}], v{VL}, s[20:23], s47 offen offset:{u*1024}')
        if i < 3:
            a('s_add_u32 s47, s47, 131072')
    a('s_cmp_eq_u32 s57, 0')
    a('s_cbranch_scc1 K1_side')
    a('s_cmp_eq_u32 s38, 2')
    a('s_cbranch_scc1 K1_V')
    mainloop(a, False, 0 if os.environ.get('NOEPI') else 16)
    srd(a, 20, 6, HF, 128*54*1024)
    srd(a, 24, 50, 0, 3456)
    a(f'v_lshrrev_b32 v251, 8, v{VL}')
    a('v_lshlrev_b32 v251, 3, v251')
    a('s_lshl_b32 s47, s53, 8')
    a('s_add_u32 s47, s47, s46')
    for c in range(8):
        a(f'buffer_load_dwordx2 v[{WF+2*c}:{WF+2*c+1}], v251, s[24:27], s47 offen offset:{32*c}')
    a('s_waitcnt vmcnt(0)')
    for c in range(8):
        for p in range(2):
            src = WF + 2*c + p
            a(f'v_lshlrev_b32 v{216+4*c+2*p}, 16, v{src}')
            a(f'v_and_b32 v{216+4*c+2*p+1}, 0xffff0000, v{src}')
    a('s_lshl_b32 s47, s28, 4')
    a('s_lshl_b32 s54, s52, 2')
    a('s_add_u32 s47, s47, s54')
    a('s_mul_i32 s47, s47, 54')
    a('s_lshl_b32 s54, s39, 3')
    a('s_lshl_b32 s55, s53, 2')
    a('s_add_u32 s54, s54, s55')
    a('s_add_u32 s47, s47, s54')
    a('s_lshl_b32 s47, s47, 10')
    for u in range(4):
        if u == 2:
            a('s_cmp_ge_u32 s54, 52')
            a('s_cbranch_scc1 K1_done')
        a('s_mov_b32 s55, s47')
        for i in range(4):
            t = TMP + 4*(i % 4)
            for half in range(2):
                c = 2*u + half
                ac = ACC + (c*4+i)*4
                for p in range(2):
                    x0, x1 = 248, 249
                    a(f'v_cvt_pk_bf16_f32 v250, v{ac+2*p}, v{ac+2*p+1}')
                    a(f'v_lshlrev_b32 v{x0}, 16, v250')
                    a(f'v_and_b32 v{x1}, 0xffff0000, v250')
                    a(f'v_add_f32 v{x0}, v{x0}, v{216+4*c+2*p}')
                    a(f'v_add_f32 v{x1}, v{x1}, v{216+4*c+2*p+1}')
                    a(f'v_cvt_pk_bf16_f32 v250, v{x0}, v{x1}')
                    a(f'v_lshlrev_b32 v{x0}, 16, v250')
                    a(f'v_and_b32 v{x1}, 0xffff0000, v250')
                    a(f'v_max_f32 v{x0}, 0, v{x0}')
                    a(f'v_max_f32 v{x1}, 0, v{x1}')
                    a(f'v_mul_f32 v{x0}, v{x0}, v{x0}')
                    a(f'v_mul_f32 v{x1}, v{x1}, v{x1}')
                    a(f'v_cvt_pk_bf16_f32 v{t+2*half+p}, v{x0}, v{x1}')
            a(f'buffer_store_dwordx4 v[{t}:{t+3}], v{VL}, s[20:23], s55 offen offset:{u*1024}')
            if i < 3:
                a(f's_add_u32 s55, s55, {54*1024}')
    a('s_branch K1_done')
    a.label('K1_V')
    mainloop(a, True, 0 if os.environ.get('NOEPI') else 16)
    srd(a, 20, 6, VF, 0x1000000)
    a('s_lshl_b32 s47, s28, 3')
    a('s_lshl_b32 s54, s52, 1')
    a('s_add_u32 s47, s47, s54')
    a('s_lshl_b32 s47, s47, 5')
    a('s_lshl_b32 s54, s39, 1')
    a('s_add_u32 s54, s54, s53')
    a('s_add_u32 s47, s47, s54')
    a('s_lshl_b32 s47, s47, 13')
    for sp in range(2):
        for c in range(8):
            t = TMP + 4*(c % 4)
            a0 = ACC + (c*4+2*sp)*4
            a1 = ACC + (c*4+2*sp+1)*4
            a(f'v_cvt_pk_bf16_f32 v{t}, v{a0}, v{a0+1}')
            a(f'v_cvt_pk_bf16_f32 v{t+1}, v{a0+2}, v{a0+3}')
            a(f'v_cvt_pk_bf16_f32 v{t+2}, v{a1}, v{a1+1}')
            a(f'v_cvt_pk_bf16_f32 v{t+3}, v{a1+2}, v{a1+3}')
            a(f'buffer_store_dwordx4 v[{t}:{t+3}], v{VL}, s[20:23], s47 offen offset:{(c%4)*1024}')
            if c == 3:
                a('s_add_u32 s47, s47, 4096')
        if sp == 0:
            a(f's_add_u32 s47, s47, {32*8192 - 4096}')
    a('s_branch K1_done')
    a.label('K1_side')
    a('s_cmp_lt_u32 s2, 192')
    a('s_cbranch_scc1 K1_done')
    a(f's_load_dwordx2 s[60:61], s[0:1], {KA["Wo"]}')
    a(f's_load_dwordx2 s[62:63], s[0:1], {KA["w2"]}')
    srd(a, 20, 6, F0, FILLSZ)
    a('s_sub_u32 s3, s2, 192')
    a('s_lshl_b32 s58, s3, 3')
    a('s_add_u32 s58, s58, s33')
    a('s_mul_i32 s3, s58, 55296')
    for r in range(4):
        a(f'v_mov_b32 v{r}, -1')
    for j in range(54):
        a(f'buffer_store_dwordx4 v[0:3], v{VL}, s[20:23], s3 offen')
        if j < 53: a('s_add_u32 s3, s3, 1024')
    a('s_waitcnt lgkmcnt(0)')
    a('s_barrier')
    a(f'v_lshrrev_b32 v1, 4, v{VL}')
    a('s_mov_b32 s37, 0x1999999a')
    for j in range(5):
        a(f'v_add_u32 v2, {64*j}, v1')
        a('v_mul_hi_u32 v3, v2, s37')
        a('v_mul_u32_u24 v4, 10, v3')
        a('v_sub_u32 v4, v2, v4')
        a('v_mul_u32_u24 v3, 1280, v3')
        a(f'v_lshl_add_u32 v{8+j}, v4, 4, v3')
    a('s_mul_i32 s34, s33, 5120')
    a('v_lshrrev_b32 v2, 2, v1')
    a('v_mul_u32_u24 v2, 160, v2')
    a('v_and_b32 v3, 3, v1')
    a('v_lshl_add_u32 v2, v3, 3, v2')
    a('v_add_u32 v13, s34, v2')
    a(f'v_add_u32 v14, 4096, v{VL}')
    srd(a, 24, 6, WOF, 0xA00000)
    a.label('K1_rl')
    a('s_and_b32 s3, s58, 7')
    a('s_lshr_b32 s47, s58, 3')
    a('s_cmp_lt_u32 s47, 128')
    a('s_cselect_b32 s8, s60, s62'); a('s_cselect_b32 s9, s61, s63')
    a(f's_mov_b32 s10, {1728*1280}'); a(f's_cmov_b32 s10, {4096*1280}')
    a('s_mov_b32 s11, 0x20000')
    a('s_cselect_b32 s54, 0, 128')
    a('s_mov_b32 s55, 54'); a('s_cmov_b32 s55, 128')
    a(f's_mov_b32 s56, {W2F - WOF}'); a('s_cmov_b32 s56, 0')
    a('s_sub_u32 s54, s47, s54')
    a('s_mul_i32 s55, s55, s3')
    a('s_add_u32 s55, s55, s54')
    a('s_mul_i32 s55, s55, 5120')
    a('s_add_u32 s55, s55, s56')
    a('s_mul_i32 s54, s54, 40960')
    a('s_mul_i32 s3, s3, 160')
    a('s_add_u32 s54, s54, s3')
    for j in range(5):
        a(f's_add_u32 m0, s34, {j*1024}')
        a('s_nop 0')
        a(f'buffer_load_dwordx4 v{8+j}, s[8:11], s54 offen lds')
    a('s_waitcnt vmcnt(0)')
    for c in range(5):
        a(f'ds_read_b64_tr_b16 v[{16+4*c}:{17+4*c}], v13 offset:{32*c}')
        a(f'ds_read_b64_tr_b16 v[{18+4*c}:{19+4*c}], v13 offset:{32*c + 2560}')
    a('s_waitcnt lgkmcnt(0)')
    for c in range(5):
        a(f'buffer_store_dwordx4 v[{16+4*c}:{19+4*c}], v{VL if c < 4 else 14}, s[24:27], s55 offen offset:{(c%4)*1024}')
    a('s_add_u32 s58, s58, 512')
    a('s_cmp_lt_u32 s58, 1456')
    a('s_cbranch_scc1 K1_rl')
    a.label('K1_done')
    a('s_endpgm')
    return name, dict(vgpr=256, grid=256, block=512, lds=131072)
```

```python
from fw import *
import struct
def f2u(x): return struct.unpack('<I', struct.pack('<f', x))[0]
CEXP = f2u((128 ** -0.5) * 1.4426950408889634)

import os
DIAG = int(os.environ.get('DIAG', '0'))
DBGT = 0x8000000
DSLP = int(os.environ.get('DSLP', '4'))
def stamp(a, i):
    if DIAG:
        a(f's_memrealtime s[{64+2*i}:{65+2*i}]')
def flush(a):
    if DIAG:
        a('s_waitcnt lgkmcnt(0)')
        a('s_mov_b64 s[90:91], exec')
        a('s_mov_b64 exec, 1')
        a('s_lshl_b32 s88, s40, 5'); a('s_add_u32 s88, s88, s41'); a('s_lshl_b32 s88, s88, 3'); a('s_add_u32 s88, s88, s33')
        a('s_lshl_b32 s88, s88, 6'); a('s_add_u32 s88, s88, s43'); a('s_lshl_b32 s88, s88, 5')
        for i in range(7):
            a(f'v_mov_b32 v{248+i}, s{64+2*i}')
        a('v_mov_b32 v255, s44')
        a('v_mov_b32 v247, 0')
        a('buffer_store_dwordx4 v[248:251], v247, s[84:87], s88 offen')
        a('buffer_store_dwordx4 v[252:255], v247, s[84:87], s88 offen offset:16')
        a('s_mov_b64 exec, s[90:91]')
def xstore(a, instr):
    l1 = a.newlabel('XS'); l2 = a.newlabel('XD')
    a('s_cmp_lg_u32 s42, 0')
    a(f's_cbranch_scc1 {l1}')
    a(instr)
    a(f's_branch {l2}')
    a.label(l1)
    a(instr + ' sc1')
    a.label(l2)

def maxchk(a, regs, t):
    regs = list(regs)
    a(f'v_max3_u32 v{t}, v{regs[0]}, v{regs[1]}, v{regs[2]}')
    i = 3
    while i + 1 < len(regs):
        a(f'v_max3_u32 v{t}, v{t}, v{regs[i]}, v{regs[i+1]}'); i += 2
    if i < len(regs):
        a(f'v_max_u32 v{t}, v{t}, v{regs[i]}')
    a(f'v_cmp_eq_u32 vcc, -1, v{t}')

def poll_setup(a, lane_reg, vaddr, vlds):
    srd(a, 92, 58, PART, 64*8*32*640)
    a('s_add_u32 s97, s40, s33')
    a('s_add_u32 s97, s97, 1')
    a('s_and_b32 s97, s97, 7')
    a('s_mul_i32 s98, s97, 20480')
    a('s_mul_i32 s99, s41, 640')
    a('s_add_u32 s98, s98, s99')
    a(f'v_lshlrev_b32 v{vlds}, 4, v{lane_reg}')
    a(f'v_add_u32 v{vaddr}, s98, v{vlds}')
    a('s_mul_i32 s98, s97, 640')
    a('s_add_u32 s98, s98, 2560')
    a(f'v_add_u32 v{vlds}, s98, v{vlds}')
    a('s_mov_b32 s96, 0')

def touch_part(a, vaddr, d, ahead):
    a(f's_add_u32 s98, s96, {163840*ahead}')
    a('s_mov_b32 exec_hi, 0xff')
    a(f'buffer_load_dwordx4 v[{d}:{d+3}], v{vaddr}, s[92:95], s98 offen')
    a('s_mov_b32 exec_hi, -1')

def poll_remote(a, tag, vaddr, vlds, d, t):
    a('s_mov_b32 exec_hi, 0xff')
    if DIAG and tag == 'A':
        stamp(a, 5)
        a(f'buffer_load_dwordx4 v[{d}:{d+3}], v{vaddr}, s[92:95], s96 offen sc1')
        a('s_waitcnt vmcnt(0)')
        stamp(a, 6)
    a.label(f'K2_pr{tag}')
    a(f'buffer_load_dwordx4 v[{d}:{d+3}], v{vaddr}, s[92:95], s96 offen sc1')
    a('s_waitcnt vmcnt(0)')
    a(f'v_max3_u32 v{t}, v{d}, v{d+1}, v{d+2}')
    a(f'v_max_u32 v{t}, v{t}, v{d+3}')
    a(f'v_cmp_eq_u32 vcc, -1, v{t}')
    a(f's_cbranch_vccz K2_pk{tag}')
    a('s_sub_u32 s44, s44, 1')
    a(f's_cbranch_scc0 K2_pr{tag}')
    a('s_branch K2_done')
    a.label(f'K2_pk{tag}')
    if DIAG and tag == 'A':
        stamp(a, 2)
    a(f'ds_write_b128 v{vlds}, v[{d}:{d+3}]')
    a('s_mov_b32 exec_hi, -1')
    a('s_add_u32 s96, s96, 163840')
    a('s_waitcnt lgkmcnt(0)')
    a('s_barrier')

def gen_k2(a):
    name = 'chain_kernel'
    kernel_begin(a, name)
    a('s_cmp_ge_u32 s2, 256')
    a('s_cbranch_scc1 K2_done')
    a(f's_load_dwordx8 s[48:55], s[0:1], {KA["Wq"]}')
    a(f's_load_dwordx4 s[56:59], s[0:1], {KA["dbg"]}')
    a('v_lshrrev_b32 v1, 6, v0')
    a('s_nop 0')
    a('v_readfirstlane_b32 s33, v1')
    a('v_and_b32 v0, 63, v0')
    a('s_mov_b32 s44, 0x400000')
    a('s_waitcnt lgkmcnt(0)')
    a('s_cmp_lg_u32 s33, 0')
    a('s_cbranch_scc1 K2_wait_role')
    srd(a, 4, 56, 0, 256)
    a('s_getreg_b32 s40, hwreg(HW_REG_XCC_ID)')
    a('s_and_b32 s40, s40, 7')
    a('s_mov_b64 exec, 1')
    a('s_lshl_b32 s3, s40, 2')
    a('v_mov_b32 v1, s3')
    a('v_mov_b32 v2, 1')
    a('buffer_atomic_add v2, v1, s[4:7], 0 offen sc0')
    a('s_waitcnt vmcnt(0)')
    a('v_mov_b32 v3, 1')
    a('v_mov_b32 v1, 32')
    a('buffer_atomic_add v3, v1, s[4:7], 0 offen sc0')
    a('s_waitcnt vmcnt(0)')
    a('v_readfirstlane_b32 s41, v2')
    a('v_readfirstlane_b32 s45, v3')
    a.label('K2_reg_poll')
    a('s_sub_u32 s44, s44, 1')
    a('s_cbranch_scc1 K2_done')
    a('buffer_load_dword v4, v1, s[4:7], 0 offen sc1')
    a('s_waitcnt vmcnt(0)')
    a('v_readfirstlane_b32 s3, v4')
    a('s_cmp_lt_u32 s3, 256')
    a('s_cbranch_scc1 K2_reg_poll')
    a('s_mov_b64 exec, 0xff')
    a('v_lshlrev_b32 v1, 2, v0')
    a('buffer_load_dword v4, v1, s[4:7], 0 offen sc1')
    a('s_waitcnt vmcnt(0)')
    a('v_cmp_ne_u32 vcc, 32, v4')
    a('s_mov_b32 s42, 0')
    a('s_cmp_eq_u64 vcc, 0')
    a('s_cbranch_scc1 K2_reg_fast')
    a('s_mov_b32 s42, 1')
    a('s_lshr_b32 s40, s45, 5')
    a('s_and_b32 s41, s45, 31')
    a.label('K2_reg_fast')
    a('s_mov_b64 exec, 1')
    a('v_mov_b32 v4, s40'); a('v_mov_b32 v5, s41'); a('v_mov_b32 v6, s42'); a('v_mov_b32 v7, 0')
    a('v_mov_b32 v1, 8192')
    a('ds_write_b128 v1, v[4:7]')
    a('s_waitcnt lgkmcnt(0)')
    a('s_mov_b64 exec, -1')
    a.label('K2_wait_role')
    a('s_barrier')
    a('v_mov_b32 v1, 8192')
    a('ds_read_b128 v[4:7], v1')
    a('s_waitcnt lgkmcnt(0)')
    a('v_readfirstlane_b32 s40, v4')
    a('v_readfirstlane_b32 s41, v5')
    a('v_readfirstlane_b32 s42, v6')
    a('s_and_b32 s40, s40, 7')
    a('s_and_b32 s41, s41, 31')
    a('s_mov_b32 s43, 0')
    if DIAG:
        srd(a, 84, 58, DBGT, 256*8*64*32)
    a('s_cmp_lt_u32 s33, 4')
    a('s_cbranch_scc1 K2_attn')
    a('s_cmp_eq_u32 s33, 7')
    a('s_cbranch_scc1 K2_red')

    a('s_cmp_eq_u32 s33, 4')
    a('s_cselect_b32 s4, s48, s50'); a('s_cselect_b32 s5, s49, s51')
    a('s_cmp_eq_u32 s33, 6')
    a('s_cselect_b32 s4, s52, s4'); a('s_cselect_b32 s5, s53, s5')
    a(f's_mov_b32 s6, {640*8192}'); a('s_mov_b32 s7, 0x20000')
    a('s_lshr_b32 s46, s41, 3')
    a('s_lshl_b32 s3, s40, 2')
    a('s_add_u32 s46, s46, s3')
    a('s_and_b32 s47, s41, 7')
    a('v_and_b32 v241, 15, v0')
    a('v_lshrrev_b32 v242, 4, v0')
    a('s_lshl_b32 s3, s46, 8')
    a('s_lshl_b32 s8, s47, 5')
    a('s_add_u32 s3, s3, s8')
    a('v_mov_b32 v243, v0')
    a('v_lshrrev_b32 v240, 1, v0')
    a('v_lshlrev_b32 v240, 13, v240')
    a('v_and_b32 v239, 1, v0')
    a('v_lshl_add_u32 v240, v239, 4, v240')
    a('v_add_u32 v240, s3, v240')
    a('s_sub_u32 s8, s33, 4')
    a('s_mul_i32 s8, s8, 20480')
    a('s_add_u32 s8, s8, 16384')
    for j in range(20):
        a(f's_add_u32 m0, s8, {j*1024}')
        a(f's_mov_b32 s3, {j*32*8192}')
        a('buffer_load_dwordx4 v240, s[4:7], s3 offen lds')
    a('v_bfe_u32 v239, v0, 2, 2')
    a('v_lshl_add_u32 v239, v242, 3, v239')
    a('v_lshlrev_b32 v239, 5, v239')
    a('v_and_b32 v238, 3, v0')
    a('v_lshl_add_u32 v239, v238, 3, v239')
    a('v_add_u32 v239, s8, v239')
    a('s_waitcnt vmcnt(0)')
    for kk in range(20):
        a(f'ds_read_b64_tr_b16 v[{4*kk}:{4*kk+1}], v239 offset:{kk*1024}')
        a(f'ds_read_b64_tr_b16 v[{4*kk+2}:{4*kk+3}], v239 offset:{kk*1024+128}')
    a('s_waitcnt lgkmcnt(0)')
    a('s_barrier')
    srd(a, 8, 58, MEMB, 64*MEMSLOT)
    a('v_lshlrev_b32 v168, 4, v243')
    a('s_mul_i32 s16, s40, 10240')
    a('s_cmp_eq_u32 s33, 6')
    a('s_cbranch_scc1 K2_vsetup')
    srd(a, 12, 58, CQK, 64*32*4096)
    a('s_and_b32 s3, s47, 1'); a('s_lshl_b32 s3, s3, 3')
    a('s_lshr_b32 s17, s47, 1'); a('s_lshl_b32 s17, s17, 10'); a('s_add_u32 s3, s3, s17')
    a('s_sub_u32 s17, s33, 4'); a('s_lshl_b32 s17, s17, 7'); a('s_add_u32 s3, s3, s17')
    a('s_lshl_b32 s17, s46, 12'); a('s_add_u32 s3, s3, s17')
    a('v_add_u32 v169, s3, v168')
    a('s_mov_b32 s18, 131072')
    a('s_mov_b32 s20, 0x00ff00ff'); a('s_mov_b32 s21, 0x00ff00ff')
    a('s_branch K2_qkv_go')
    a.label('K2_vsetup')
    srd(a, 12, 58, CV, 64*32*2048)
    a('s_and_b32 s3, s47, 1'); a('s_lshl_b32 s3, s3, 3')
    a('s_lshr_b32 s17, s47, 1'); a('s_lshl_b32 s17, s17, 9'); a('s_add_u32 s3, s3, s17')
    a('s_lshl_b32 s17, s46, 11'); a('s_add_u32 s3, s3, s17')
    a('v_add_u32 v169, s3, v168')
    a('s_mov_b32 s18, 65536')
    a('s_mov_b32 s20, -1'); a('s_mov_b32 s21, 0')
    a.label('K2_qkv_go')
    a('s_setprio 2')
    a('s_mov_b32 s17, 0')
    srd(a, 24, 58, KF, 0x2000000)
    a('s_lshl_b32 s28, s40, 14')
    a('s_lshl_b32 s29, s40, 15')
    a('s_add_u32 s29, s29, 0x1000000')
    def dma_kv(tag, lo=0, hi=22, adv=True):
        rng = [(0, 22), (22, 43), (43, 64)]
        for m in range(3):
            if tag[0] == 'V' and m < 2: continue
            if tag[0] == 'Q' and m == 2: continue
            if tag[0] != 'V' and m < (1 if tag[0] == 'Q' else 2):
                a(f's_cmp_lg_u32 s33, {4+m}')
                a(f's_cbranch_scc1 K2_dma{tag}{m+1}')
            for q in list(range(*rng[m]))[lo:hi]:
                head, f, isv = q >> 4, q & 7, (q >> 3) & 1
                rel = head*8192 + f*1024 if isv else head*4096 + (f >> 2)*131072 + (f & 3)*1024
                a(f's_mov_b32 m0, {16384 + q*1024}')
                a(f's_add_u32 s34, s{29 if isv else 28}, {rel}')
                a('buffer_load_dwordx4 v168, s[24:27], s34 offen lds')
            a(f's_branch K2_dmae{tag}')
            a.label(f'K2_dma{tag}{m+1}')
        a.label(f'K2_dmae{tag}')
        if adv:
            a('s_add_u32 s28, s28, 262144')
            a('s_add_u32 s29, s29, 262144')
    def warm(tag, ahead):
        a('s_cmp_eq_u32 s33, 6')
        a(f's_cbranch_scc1 K2_wdone{tag}')
        a('s_lshl_b32 s31, s41, 1')
        a('s_add_u32 s31, s31, s33')
        a('s_sub_u32 s31, s31, 4')
        a('s_lshr_b32 s34, s31, 4')
        a('s_and_b32 s35, s31, 7')
        a('s_bitcmp1_b32 s31, 3')
        a(f's_cbranch_scc1 K2_wv{tag}')
        a('s_lshl_b32 s34, s34, 12')
        a('s_lshr_b32 s36, s35, 2')
        a('s_lshl_b32 s36, s36, 17')
        a('s_and_b32 s35, s35, 3')
        a('s_add_u32 s34, s34, s36')
        a('s_add_u32 s34, s34, s28')
        a(f's_branch K2_wi{tag}')
        a.label(f'K2_wv{tag}')
        a('s_lshl_b32 s34, s34, 13')
        a('s_add_u32 s34, s34, s29')
        a.label(f'K2_wi{tag}')
        a('s_lshl_b32 s35, s35, 10')
        a('s_add_u32 s34, s34, s35')
        a(f's_add_u32 s34, s34, {262144*ahead}')
        a('buffer_load_dwordx4 v[176:179], v168, s[24:27], s34 offen')
        a.label(f'K2_wdone{tag}')
    poll_setup(a, 243, 180, 181)
    touch_part(a, 180, 188, 0); touch_part(a, 180, 188, 1)
    srd(a, 60, 58, MEMB, PART - MEMB)
    a('s_lshl_b32 s36, s41, 10')
    a('s_lshl_b32 s37, s40, 14')
    a('s_add_u32 s37, s37, s36')
    a(f's_add_u32 s37, s37, {CQK - MEMB}')
    a('s_mov_b32 s38, 131072')
    a('s_cmp_lt_u32 s41, 16')
    a('s_cbranch_scc1 K2_tch_ok')
    a('s_lshl_b32 s37, s40, 13')
    a('s_add_u32 s37, s37, s36')
    a(f's_add_u32 s37, s37, {CV - MEMB - 16384}')
    a('s_mov_b32 s38, 65536')
    a('s_cmp_lt_u32 s41, 24')
    a('s_cbranch_scc1 K2_tch_ok')
    a('s_mul_i32 s37, s40, 10240')
    a('s_add_u32 s37, s37, s36')
    a(f's_sub_u32 s37, s37, {24576}')
    a(f's_mov_b32 s38, {MEMSLOT}')
    a.label('K2_tch_ok')
    a('s_mul_i32 s39, s40, 10240')
    a('s_add_u32 s39, s39, s36')
    a('s_add_u32 s39, s39, 8192')
    def touch_x(tag):
        a('s_cmp_lg_u32 s33, 6')
        a(f's_cbranch_scc1 K2_tx{tag}')
        a('buffer_load_dwordx4 v[176:179], v168, s[60:63], s37 offen')
        a('s_add_u32 s37, s37, s38')
        a('s_cmp_gt_u32 s41, 1')
        a(f's_cbranch_scc1 K2_tx{tag}')
        a('buffer_load_dwordx4 v[176:179], v168, s[60:63], s39 offen')
        a(f's_add_u32 s39, s39, {MEMSLOT}')
        a.label(f'K2_tx{tag}')
    touch_x('a'); touch_x('b')
    warm('a', 1); warm('b', 2)
    dma_kv('0')
    a('s_waitcnt vmcnt(0)')
    a('s_barrier')
    a('v_add_u32 v170, 4096, v168')
    a('v_add_u32 v171, 8192, v168')
    def mload(j):
        a(f'buffer_load_dwordx4 v[{80+4*j}:{83+4*j}], v{168 if j < 4 else 170 if j < 8 else 171}, s[8:11], s16 offen offset:{1024*(j%4)} sc1')
    for isV in (False, True):
        sfx = 'V' if isV else 'Q'
        if not isV:
            a('s_cmp_eq_u32 s33, 6')
            a('s_cbranch_scc1 K2_qkv_loopV')
        a.label(f'K2_qkv_loop{sfx}')
        stamp(a, 0)
        for j in range(10):
            mload(j)
        def chk_ops(g):
            r = list(range(80+8*g, 88+8*g))
            return [f'v_max3_u32 v172, v{r[0]}, v{r[1]}, v{r[2]}', f'v_max3_u32 v172, v172, v{r[3]}, v{r[4]}',
                    f'v_max3_u32 v172, v172, v{r[5]}, v{r[6]}', f'v_max_u32 v172, v172, v{r[7]}', 'v_cmp_eq_u32 vcc, -1, v172']
        def mm(kk):
            j = kk >> 1
            D = 160 + 4*(kk & 1)
            C = '0' if kk < 2 else f'v[{D}:{D+3}]'
            if isV:
                a(f'v_mfma_f32_16x16x32_bf16 v[{D}:{D+3}], v[{80+4*j}:{83+4*j}], v[{4*kk}:{4*kk+3}], {C}')
            else:
                a(f'v_mfma_f32_16x16x32_bf16 v[{D}:{D+3}], v[{4*kk}:{4*kk+3}], v[{80+4*j}:{83+4*j}], {C}')
        a.label(f'K2_qchk{sfx}0')
        a('s_waitcnt vmcnt(8)')
        for o in chk_ops(0): a(o)
        a(f's_cbranch_vccnz K2_qret{sfx}0')
        stamp(a, 1)
        for g in range(5):
            a.label(f'K2_qmm{sfx}{g}')
            mm(4*g); mm(4*g+1)
            if g < 4:
                a(f's_waitcnt vmcnt({2*(3-g)})')
                ops = chk_ops(g+1)
                a(ops[0]); a(ops[1])
                mm(4*g+2)
                a(ops[2]); a(ops[3])
                mm(4*g+3)
                a(ops[4])
                a(f's_cbranch_vccnz K2_qret{sfx}{g+1}')
                if g == 3: stamp(a, 2)
            else:
                mm(4*g+2); mm(4*g+3)
        a('s_nop 7')
        if isV:
            for r in range(4):
                a(f'v_permlane32_swap_b32 v{164+r}, v{172+r}')
            for r in range(4):
                a(f'v_add_f32 v{160+r}, v{160+r}, v{172+r}')
        else:
            for r in range(4):
                a(f'v_add_f32_dpp v{160+r}, v{164+r}, v{160+r} row_ror:8 row_mask:0xf bank_mask:0xf')
        a('v_cvt_pk_bf16_f32 v164, v160, v161')
        a('v_cvt_pk_bf16_f32 v165, v162, v163')
        a('v_min_u32 v164, -2, v164')
        a('v_min_u32 v165, -2, v165')
        a('s_mov_b64 exec, s[20:21]')
        xstore(a, 'buffer_store_dwordx2 v[164:165], v169, s[12:15], s17 offen')
        a('s_mov_b64 exec, -1')
        stamp(a, 3)
        a('s_add_u32 s43, s43, 1')
        a('s_cmp_ge_u32 s43, 64')
        a('s_cbranch_scc1 K2_done')
        a('s_add_u32 s17, s17, s18')
        a(f's_add_u32 s16, s16, {MEMSLOT}')
        a('s_barrier')
        a('s_setprio 0')
        DS = int(os.environ.get('DSPLIT', '0'))
        if DS:
            a(f's_sleep {DSLP}')
            dma_kv(sfx + 'e', 0, DS, False)
        a('s_barrier')
        stamp(a, 4)
        if not os.environ.get('NODMA'):
            dma_kv(sfx, DS, 22)
        touch_part(a, 180, 188, 2)
        touch_x(sfx)
        warm(sfx, 1)
        stamp(a, 5)
        a('s_setprio 2')
        poll_remote(a, sfx, 180, 181, 184, 182)
        if DIAG:
            a('s_sub_u32 s43, s43, 1')
            flush(a)
            a('s_add_u32 s43, s43, 1')
        a('s_barrier')
        a(f's_branch K2_qkv_loop{sfx}')
        for g in range(5):
            a.label(f'K2_qret{sfx}{g}')
            a('s_sub_u32 s44, s44, 1')
            a('s_cbranch_scc1 K2_done')
            a('s_waitcnt vmcnt(0)')
            for j in range(2*g, 10):
                mload(j)
            if g == 0:
                a(f's_branch K2_qchk{sfx}0')
            else:
                a(f's_waitcnt vmcnt({2*(4-g)})')
                for o in chk_ops(g): a(o)
                a(f's_cbranch_vccz K2_qmm{sfx}{g}')
                a(f's_branch K2_qret{sfx}{g}')

    a.label('K2_red')
    srd(a, 8, 58, PART, 64*8*32*640)
    srd(a, 12, 58, MEMB, 64*MEMSLOT)
    a('s_mov_b32 exec_lo, -1'); a('s_mov_b32 exec_hi, 0xff')
    a('v_lshlrev_b32 v1, 4, v0')
    a('s_mul_i32 s3, s41, 640')
    a('v_add_u32 v2, s3, v1')
    for xx in range(8):
        a(f'v_add_u32 v{8+xx}, {xx*20480}, v2')
    a('s_mul_i32 s3, s40, 20480')
    a('v_add_u32 v3, s3, v2')
    a('v_lshrrev_b32 v5, 3, v0')
    a('s_mul_i32 s3, s41, 20')
    a('v_lshl_add_u32 v5, v5, 2, s3')
    a('v_and_b32 v4, 7, v0')
    a('v_lshlrev_b32 v4, 4, v4')
    a('v_lshrrev_b32 v6, 6, v5')
    a('v_lshl_add_u32 v4, v6, 10, v4')
    a('v_bfe_u32 v6, v5, 3, 2')
    a('v_lshl_add_u32 v4, v6, 8, v4')
    a('v_bfe_u32 v6, v5, 5, 1')
    a('v_lshl_add_u32 v4, v6, 7, v4')
    a('v_bfe_u32 v6, v5, 2, 1')
    a('v_lshl_add_u32 v4, v6, 3, v4')
    a('s_mul_i32 s16, s40, 10240')
    a('v_add_u32 v4, s16, v4')
    a('s_mul_i32 s3, s40, 640')
    a('s_add_u32 s3, s3, 2560')
    a('v_add_u32 v7, s3, v1')
    a('s_mov_b32 s16, 0')
    a(f's_mov_b32 s17, {MEMSLOT}')
    a('s_setprio 3')
    a('s_barrier')
    a('s_barrier')
    a.label('K2_red_loop')
    a('s_barrier')
    a('s_barrier')
    stamp(a, 0)
    for w in range(4):
        a(f'ds_read_b128 v[{16+4*w}:{19+4*w}], v1 offset:{640*w}')
    a('s_waitcnt lgkmcnt(0)')
    for r in range(4):
        a(f'v_add_f32 v{16+r}, v{16+r}, v{20+r}')
        a(f'v_add_f32 v{24+r}, v{24+r}, v{28+r}')
    for r in range(4):
        a(f'v_add_f32 v{16+r}, v{16+r}, v{24+r}')
    for r in range(4):
        a(f'v_min_u32 v{16+r}, -2, v{16+r}')
    a('buffer_store_dwordx4 v[16:19], v3, s[8:11], s16 offen sc1')
    stamp(a, 1)
    a('ds_write_b128 v7, v[16:19]')
    a('s_waitcnt lgkmcnt(0)')
    a('s_barrier')
    stamp(a, 2)
    for xx in range(8):
        a(f'ds_read_b128 v[{32+4*xx}:{35+4*xx}], v1 offset:{2560+640*xx}')
    for xx in range(1, 8):
        a(f's_waitcnt lgkmcnt({7-xx})')
        for r in range(4):
            a(f'v_add_f32 v{20+r}, v{32+r if xx == 1 else 20+r}, v{32+4*xx+r}')
    a('v_cvt_pk_bf16_f32 v24, v20, v21')
    a('v_cvt_pk_bf16_f32 v25, v22, v23')
    a('v_min_u32 v24, -2, v24')
    a('v_min_u32 v25, -2, v25')
    xstore(a, 'buffer_store_dwordx2 v[24:25], v4, s[12:15], s17 offen')
    stamp(a, 3)
    a('s_barrier')
    flush(a)
    a('s_add_u32 s43, s43, 1')
    a('s_cmp_ge_u32 s43, 63')
    a('s_cbranch_scc1 K2_done')
    a('s_add_u32 s16, s16, 163840')
    a(f's_add_u32 s17, s17, {MEMSLOT}')
    a('s_branch K2_red_loop')

    KX, VX, WO, Q, KM, VM, S, BIAS, P, O, OB, RR = 0, 32, 64, 96, 112, 128, 144, 156, 160, 168, 200, 216
    a.label('K2_attn')
    a('s_lshl_b32 s46, s40, 2')
    a('s_add_u32 s46, s46, s33')
    a('v_mov_b32 v243, v0')
    a('v_and_b32 v241, 15, v0')
    a('v_lshrrev_b32 v242, 4, v0')
    srd(a, 4, 54, 0, 4096*1280)
    a('v_lshrrev_b32 v240, 2, v0')
    a('v_mul_u32_u24 v240, 1280, v240')
    a('v_and_b32 v239, 3, v0')
    a('v_lshl_add_u32 v240, v239, 4, v240')
    a('s_mul_i32 s3, s46, 163840')
    a('s_mul_i32 s8, s41, 40')
    a('s_add_u32 s3, s3, s8')
    a('v_add_u32 v240, s3, v240')
    a('s_lshl_b32 s8, s33, 13')
    a('s_add_u32 s8, s8, 81920')
    for j in range(8):
        a(f's_add_u32 m0, s8, {j*1024}')
        a(f's_mov_b32 s3, {j*16*1280}')
        a('buffer_load_dwordx4 v240, s[4:7], s3 offen lds')
    a('v_lshrrev_b32 v238, 2, v0')
    a('v_lshlrev_b32 v238, 6, v238')
    a('v_lshl_add_u32 v238, v239, 3, v238')
    a('v_add_u32 v238, s8, v238')
    a('s_waitcnt vmcnt(0)')
    for tile in range(2):
        for u in range(4):
            r = WO + (tile*4+u)*4
            a(f'ds_read_b64_tr_b16 v[{r}:{r+1}], v238 offset:{u*2048 + tile*32}')
            a(f'ds_read_b64_tr_b16 v[{r+2}:{r+3}], v238 offset:{u*2048 + 1024 + tile*32}')
    a('s_waitcnt lgkmcnt(0)')
    a('s_barrier')
    srd(a, 8, 58, KF, 0x1000000)
    srd(a, 12, 58, VF, 0x1000000)
    srd(a, 16, 58, CQK, 64*32*4096)
    srd(a, 20, 58, CV, 64*32*2048)
    a('v_lshlrev_b32 v224, 4, v243')
    a('v_add_u32 v225, 0x20000, v224')
    a('v_add_u32 v226, 4096, v224')
    a('v_and_b32 v227, 7, v243')
    a('v_lshlrev_b32 v227, 4, v227')
    a('v_lshl_add_u32 v227, v242, 7, v227')
    a('v_and_b32 v228, 31, v243')
    a('v_lshlrev_b32 v228, 4, v228')
    a('s_mul_i32 s3, s33, 640')
    a('v_add_u32 v229, s3, v227')
    a('v_add_u32 v231, 8448, v224')
    a('v_cmp_gt_u32 vcc, 8, v241')
    a('s_nop 1')
    a('v_cndmask_b32 v229, v231, v229, vcc')
    a('s_add_u32 s3, s3, 512')
    a('v_add_u32 v230, s3, v224')
    a('v_cmp_gt_u32 vcc, 8, v243')
    a('s_nop 1')
    a('v_cndmask_b32 v230, v231, v230, vcc')
    a('v_mov_b32 v232, 0xf149f2ca')
    a('v_cmp_gt_u32 vcc, 32, v243')
    a('s_nop 1')
    for r in range(4):
        a(f'v_cndmask_b32 v{BIAS+r}, 0, v232, vcc')
    for r in range(16):
        a(f'v_mov_b32 v{VM+r}, 0')
    a('s_lshl_b32 s24, s46, 12')
    a('s_lshl_b32 s25, s46, 13')
    a('s_lshl_b32 s26, s46, 12')
    a('s_lshl_b32 s27, s46, 11')
    a(f's_mov_b32 s28, 0x{CEXP:x}')
    a('s_lshl_b32 s3, s33, 14')
    a('s_add_u32 s3, s3, 16384')
    a('v_add_u32 v225, s3, v224')
    def prefetch():
        for f in range(16):
            a(f'ds_read_b128 v[{KX+4*f}:{KX+4*f+3}], v225 offset:{f*1024}')
        a('s_waitcnt lgkmcnt(0)')
    def ld_qk():
        for u in range(4):
            a(f'buffer_load_dwordx4 v[{Q+4*u}:{Q+4*u+3}], v224, s[16:19], s26 offen offset:{u*1024} sc1')
    def ld_vm():
        a('s_mov_b32 exec_lo, 0')
        for u in range(4):
            a(f'buffer_load_dwordx4 v[{VM+4*u}:{VM+4*u+3}], v228, s[20:23], s27 offen offset:{u*512} sc1')
        a('s_mov_b32 exec_lo, -1')
    poll_setup(a, 243, 235, 236)
    touch_part(a, 235, 112, 0); touch_part(a, 235, 112, 1)
    a('s_setprio 1')
    a('s_barrier')
    prefetch()
    a.label('K2_at_loop')
    a('s_barrier')
    stamp(a, 0)
    ld_qk()
    ld_vm()
    a.label('K2_at_chk')
    a('s_waitcnt vmcnt(4)')
    maxchk(a, range(Q, Q+16), 232)
    a('s_cbranch_vccnz K2_at_ret')
    stamp(a, 1)
    m_, t_, l_ = 232, 233, 234
    def smm(t3, u):
        A = (KX + (t3*4+u)*4) if t3 < 2 else Q + 4*u
        acc = S + 4*t3
        C = (f'v[{BIAS}:{BIAS+3}]' if t3 == 2 else '0') if u == 0 else f'v[{acc}:{acc+3}]'
        a(f'v_mfma_f32_16x16x32_bf16 v[{acc}:{acc+3}], v[{A}:{A+3}], v[{Q+4*u}:{Q+4*u+3}], {C}')
    for u in range(4): smm(0, u)
    a.label('K2_at_vchk')
    a('s_waitcnt vmcnt(0)')
    vr_ = list(range(VM, VM+16))
    vops = [f'v_max3_u32 v{t_}, v{vr_[0]}, v{vr_[1]}, v{vr_[2]}'] + [f'v_max3_u32 v{t_}, v{t_}, v{vr_[i]}, v{vr_[i+1]}' for i in range(3, 15, 2)] + [f'v_max_u32 v{t_}, v{t_}, v{vr_[15]}', f'v_cmp_eq_u32 vcc, -1, v{t_}']
    for u in range(4):
        smm(1, u)
        a(vops[2*u]); a(vops[2*u+1])
    a(vops[8])
    a('s_cbranch_vccnz K2_at_vret')
    a.label('K2_at_vok')
    stamp(a, 3)
    smm(2, 0)
    a(f'v_max3_f32 v{m_}, v{S}, v{S+1}, v{S+2}')
    smm(2, 1)
    a(f'v_max_f32 v{m_}, v{m_}, v{S+3}')
    smm(2, 2)
    smm(2, 3)
    a('s_nop 3')
    a(f'v_max3_f32 v{m_}, v{m_}, v{S+4}, v{S+5}')
    a(f'v_max3_f32 v{m_}, v{m_}, v{S+6}, v{S+7}')
    a('s_nop 1')
    a(f'v_max3_f32 v{m_}, v{m_}, v{S+8}, v{S+9}')
    a(f'v_max3_f32 v{m_}, v{m_}, v{S+10}, v{S+11}')
    for sw in ('32', '16'):
        a(f'v_mov_b32 v{t_}, v{m_}')
        a('s_nop 1')
        a(f'v_permlane{sw}_swap_b32 v{m_}, v{t_}')
        a(f'v_max_f32 v{m_}, v{m_}, v{t_}')
    a(f'v_mul_f32 v{m_}, s28, v{m_}')
    for i in range(8):
        a(f'v_fma_f32 v{S+i}, v{S+i}, s28, -v{m_}')
    for i in range(8):
        a(f'v_exp_f32 v{S+i}, v{S+i}')
    for i in range(8, 12):
        a(f'v_fma_f32 v{S+i}, v{S+i}, s28, -v{m_}')
    for i in range(4):
        a(f'v_cvt_pk_bf16_f32 v{P+i}, v{S+2*i}, v{S+2*i+1}')
    stamp(a, 2)
    def pvx(ct): a(f'v_mfma_f32_16x16x32_bf16 v[{O+4*ct}:{O+4*ct+3}], v[{VX+4*ct}:{VX+4*ct+3}], v[{P}:{P+3}], 0')
    def pvm(ct): a(f'v_mfma_f32_16x16x16_bf16 v[{O+4*ct}:{O+4*ct+3}], v[{VM+2*ct}:{VM+2*ct+1}], v[{P+4}:{P+5}], v[{O+4*ct}:{O+4*ct+3}]')
    def cvo(u2):
        for hh in range(2):
            o = O + 4*(2*u2+hh)
            a(f'v_cvt_pk_bf16_f32 v{OB+4*u2+2*hh}, v{o}, v{o+1}')
            a(f'v_cvt_pk_bf16_f32 v{OB+4*u2+2*hh+1}, v{o+2}, v{o+3}')
    def wom(uu, tile):
        C = '0' if uu == 0 else f'v[{RR+4*tile}:{RR+4*tile+3}]'
        a(f'v_mfma_f32_16x16x32_bf16 v[{RR+4*tile}:{RR+4*tile+3}], v[{WO+(tile*4+uu)*4}:{WO+(tile*4+uu)*4+3}], v[{OB+4*uu}:{OB+4*uu+3}], {C}')
    a(f'v_exp_f32 v{S+8}, v{S+8}')
    a(f'v_exp_f32 v{S+9}, v{S+9}')
    pvx(0)
    a(f'v_exp_f32 v{S+10}, v{S+10}')
    pvx(1)
    a(f'v_exp_f32 v{S+11}, v{S+11}')
    pvx(2)
    a(f'v_cvt_pk_bf16_f32 v{P+4}, v{S+8}, v{S+9}')
    a(f'v_cvt_pk_bf16_f32 v{P+5}, v{S+10}, v{S+11}')
    pvx(3)
    a(f'v_add_f32 v{l_}, v{S}, v{S+1}')
    a(f'v_add3_f32 v{l_}, v{l_}, v{S+2}, v{S+3}') if False else (a(f'v_add_f32 v{l_}, v{l_}, v{S+2}'), a(f'v_add_f32 v{l_}, v{l_}, v{S+3}'))
    pvm(0)
    a(f'v_add_f32 v{l_}, v{l_}, v{S+4}'); a(f'v_add_f32 v{l_}, v{l_}, v{S+5}')
    pvm(1)
    a(f'v_add_f32 v{l_}, v{l_}, v{S+6}'); a(f'v_add_f32 v{l_}, v{l_}, v{S+7}')
    pvm(2)
    a(f'v_add_f32 v{l_}, v{l_}, v{S+8}'); a(f'v_add_f32 v{l_}, v{l_}, v{S+9}')
    pvm(3)
    a(f'v_add_f32 v{l_}, v{l_}, v{S+10}'); a(f'v_add_f32 v{l_}, v{l_}, v{S+11}')
    pvx(4)
    a(f'v_mov_b32 v{t_}, v{l_}')
    pvx(5)
    cvo(0)
    pvx(6)
    a(f'v_permlane32_swap_b32 v{l_}, v{t_}')
    pvx(7)
    cvo(1)
    pvm(4)
    a(f'v_add_f32 v{l_}, v{l_}, v{t_}')
    pvm(5)
    a(f'v_mov_b32 v{t_}, v{l_}')
    pvm(6)
    pvm(7)
    wom(0, 0)
    a(f'v_permlane16_swap_b32 v{l_}, v{t_}')
    wom(0, 1)
    a(f'v_add_f32 v{l_}, v{l_}, v{t_}')
    wom(1, 0)
    a(f'v_rcp_f32 v{l_}, v{l_}')
    wom(1, 1)
    cvo(2)
    cvo(3)
    wom(2, 0)
    wom(2, 1)
    wom(3, 0)
    wom(3, 1)
    a('s_nop 6')
    for r in range(8):
        a(f'v_mul_f32 v{RR+r}, v{RR+r}, v{l_}')
    a(f'ds_write_b128 v229, v[{RR}:{RR+3}]')
    a(f'ds_write_b128 v230, v[{RR+4}:{RR+7}]')
    a('s_waitcnt lgkmcnt(0)')
    stamp(a, 4)
    a('s_barrier')
    poll_remote(a, 'A', 235, 236, 240, 237)
    touch_part(a, 235, 112, 1)
    flush(a)
    a('s_add_u32 s43, s43, 1')
    a('s_cmp_ge_u32 s43, 63')
    a('s_cbranch_scc1 K2_done')
    a('s_add_u32 s26, s26, 131072')
    a('s_add_u32 s27, s27, 65536')
    a('s_barrier')
    prefetch()
    a('s_branch K2_at_loop')
    a.label('K2_at_ret')
    a('s_sub_u32 s44, s44, 1')
    a('s_cbranch_scc1 K2_done')
    a('s_waitcnt vmcnt(0)')
    ld_qk()
    ld_vm()
    a('s_branch K2_at_chk')
    a.label('K2_at_vret')
    a('s_sub_u32 s44, s44, 1')
    a('s_cbranch_scc1 K2_done')
    ld_vm()
    a('s_waitcnt vmcnt(0)')
    maxchk(a, range(VM, VM+16), 233)
    a('s_cbranch_vccz K2_at_vok')
    a('s_branch K2_at_vret')
    a.label('K2_done')
    a('s_endpgm')
    return name, dict(vgpr=256, grid=256, block=512, lds=114688)
```

```python
from fw import *
AS, AG = 256, 336
NB = 4
FR = 0
VL = 200
VT = 201
VW4 = 205

def gemm_part(a, tag, acc, nsteps_sreg, tok_srd, w_srd, s_tok, s_w):
    def ld(b):
        base = FR + 36*b
        for c in range(5):
            a(f'buffer_load_dwordx4 v[{base+16+4*c}:{base+19+4*c}], v{VL if c < 4 else VW4}, s[{w_srd}:{w_srd+3}], s{s_w} offen offset:{(c%4)*1024}')
        for i in range(4):
            a(f'buffer_load_dwordx4 v[{base+4*i}:{base+4*i+3}], v{VT+i}, s[{tok_srd}:{tok_srd+3}], s{s_tok} offen')
        a(f's_add_u32 s{s_w}, s{s_w}, 5120')
        a(f's_add_u32 s{s_tok}, s{s_tok}, 1024')
    for b in range(NB-1):
        ld(b)
    for r in range(80):
        a(f'v_accvgpr_write_b32 a{acc-256+r}, 0')
    a('s_mov_b32 s45, 0')
    a.label(f'K4_loop{tag}')
    for b in range(NB):
        ld((b+NB-1) % NB)
        a(f's_waitcnt vmcnt({9*(NB-1)})')
        base = FR + 36*b
        for c in range(5):
            for i in range(4):
                ac = R(acc + (i*5+c)*4, 4)
                a(f'v_mfma_f32_16x16x32_bf16 {ac}, v[{base+16+4*c}:{base+19+4*c}], v[{base+4*i}:{base+4*i+3}], {ac}')
        a('s_add_u32 s45, s45, 1')
        a(f's_cmp_ge_u32 s45, s{nsteps_sreg}')
        a(f's_cbranch_scc1 K4_end{tag}')
    a(f's_branch K4_loop{tag}')
    a.label(f'K4_end{tag}')
    a('s_waitcnt vmcnt(0)')

def gen_k4(a):
    name = 'final_kernel'
    kernel_begin(a, name)
    a('s_cmp_ge_u32 s2, 256')
    a('s_cbranch_scc1 K4_done')
    a(f's_load_dwordx2 s[4:5], s[0:1], {KA["x"]}')
    a(f's_load_dwordx2 s[50:51], s[0:1], {KA["b2"]}')
    a(f's_load_dwordx2 s[52:53], s[0:1], {KA["out"]}')
    a(f's_load_dwordx2 s[54:55], s[0:1], {KA["ws"]}')
    a('v_lshrrev_b32 v1, 6, v0')
    a('s_nop 0')
    a('v_readfirstlane_b32 s33, v1')
    a('s_lshr_b32 s35, s2, 5')
    a('s_and_b32 s36, s2, 7')
    a('s_lshl_b32 s36, s36, 2')
    a('s_bfe_u32 s3, s2, 0x20003')
    a('s_add_u32 s36, s36, s3')
    a('v_and_b32 v1, 63, v0')
    a(f'v_lshlrev_b32 v{VL}, 4, v1')
    a(f'v_add_u32 v{VW4}, 4096, v{VL}')
    a('s_waitcnt lgkmcnt(0)')
    srd(a, 8, 54, WOF, 8*128*5120)
    srd(a, 12, 54, W2F, 8*54*5120)
    srd(a, 16, 54, OF, 0x1000000)
    srd(a, 20, 54, HF, 128*54*1024)
    for i in range(4):
        a(f'v_add_u32 v{VT+i}, {i*131072}, v{VL}')
    a('s_lshl_b32 s40, s36, 19')
    a('s_lshl_b32 s3, s33, 15')
    a('s_add_u32 s40, s40, s3')
    a('s_lshl_b32 s41, s35, 7')
    a('s_lshl_b32 s3, s33, 5')
    a('s_add_u32 s41, s41, s3')
    a('s_mul_i32 s41, s41, 5120')
    a('s_mov_b32 s42, 32')
    gemm_part(a, 'S', AS, 42, 16, 8, 40, 41)
    for i in range(4):
        a(f'v_add_u32 v{VT+i}, {i*54*1024}, v{VL}')
    a('s_mul_i32 s3, s33, 13')
    a('s_min_u32 s43, s33, 2')
    a('s_add_u32 s3, s3, s43')
    a('s_mul_i32 s40, s36, 4*54*1024')
    a('s_lshl_b32 s43, s3, 10')
    a('s_add_u32 s40, s40, s43')
    a('s_mul_i32 s41, s35, 54')
    a('s_add_u32 s41, s41, s3')
    a('s_mul_i32 s41, s41, 5120')
    a('s_cmp_lt_u32 s33, 2')
    a('s_cselect_b32 s42, 14, 13')
    gemm_part(a, 'G', AG, 42, 20, 12, 40, 41)
    a('s_nop 7')
    for i in range(4):
        a(f's_cmp_eq_u32 s33, {i}')
        a(f's_cbranch_scc1 K4_skipw{i}')
        a(f's_cmp_gt_u32 s33, {i}')
        a('s_cselect_b32 s3, 1, 0')
        a('s_sub_u32 s3, s33, s3')
        a(f's_add_u32 s3, s3, {3*i}')
        a('s_mul_i32 s3, s3, 10240')
        a(f'v_add_u32 v206, s3, v{VL}')
        for gm in range(2):
            for c in range(5):
                ac = R((AS if gm == 0 else AG) + (i*5+c)*4, 4)
                a(f'ds_write_b128 v206, {ac} offset:{(gm*5+c)*1024}')
        a.label(f'K4_skipw{i}')
    a('s_waitcnt lgkmcnt(0)')
    a('s_barrier')
    for i in range(4):
        a(f's_cmp_lg_u32 s33, {i}')
        a(f's_cbranch_scc1 K4_mv{i}')
        for r in range(20):
            a(f'v_accvgpr_read_b32 v{160+r}, a{AS-256+i*20+r}')
            a(f'v_accvgpr_read_b32 v{180+r}, a{AG-256+i*20+r}')
        a.label(f'K4_mv{i}')
    a('s_mul_i32 s3, s33, 30720')
    a(f'v_add_u32 v206, s3, v{VL}')
    for j in range(3):
        for f in range(10):
            a(f'ds_read_b128 v[{(j*10+f)*4}:{(j*10+f)*4+3}], v206 offset:{(j*10+f)*1024}')
    srd(a, 24, 4, 0, 2048*1280)
    srd(a, 28, 52, 0, 2048*1280)
    srd(a, 44, 50, 0, 1280)
    a(f'v_lshrrev_b32 v201, 4, v{VL}')
    a('v_and_b32 v202, 15, v201')
    a('v_lshrrev_b32 v203, 4, v201')
    a('v_lshlrev_b32 v203, 3, v203')
    a('v_mul_u32_u24 v202, 1280, v202')
    a('v_add_u32 v202, v202, v203')
    a('s_lshl_b32 s3, s36, 2')
    a('s_add_u32 s3, s3, s33')
    a('s_mul_i32 s3, s3, 20480')
    a('s_mul_i32 s37, s35, 160')
    a('s_add_u32 s3, s3, s37')
    XR, BR = 208, 218
    for c in range(5):
        a(f'buffer_load_dwordx2 v[{XR+2*c}:{XR+1+2*c}], v202, s[24:27], s3 offen offset:{32*c}')
    for c in range(5):
        a(f'buffer_load_dwordx2 v[{BR+2*c}:{BR+1+2*c}], v203, s[44:47], s37 offen offset:{32*c}')
    a('s_waitcnt lgkmcnt(0)')
    for j in range(3):
        for r in range(40):
            a(f'v_add_f32 v{160+r}, v{160+r}, v{j*40+r}')
    a('s_waitcnt vmcnt(0)')
    x0, x1, y0, y1, t = 0, 1, 2, 3, 4
    for c in range(5):
        for p in range(2):
            S0, G0 = 160+4*c+2*p, 180+4*c+2*p
            a(f'v_cvt_pk_bf16_f32 v{t}, v{G0}, v{G0+1}')
            a(f'v_lshlrev_b32 v{x0}, 16, v{t}')
            a(f'v_and_b32 v{x1}, 0xffff0000, v{t}')
            a(f'v_lshlrev_b32 v{y0}, 16, v{BR+2*c+p}')
            a(f'v_and_b32 v{y1}, 0xffff0000, v{BR+2*c+p}')
            a(f'v_add_f32 v{x0}, v{x0}, v{y0}')
            a(f'v_add_f32 v{x1}, v{x1}, v{y1}')
            a(f'v_cvt_pk_bf16_f32 v{t}, v{x0}, v{x1}')
            a(f'v_lshlrev_b32 v{x0}, 16, v{t}')
            a(f'v_and_b32 v{x1}, 0xffff0000, v{t}')
            a(f'v_mul_f32 v{y0}, 0xbfb8aa3b, v{x0}')
            a(f'v_mul_f32 v{y1}, 0xbfb8aa3b, v{x1}')
            a(f'v_exp_f32 v{y0}, v{y0}')
            a(f'v_exp_f32 v{y1}, v{y1}')
            a('s_nop 0')
            a(f'v_add_f32 v{y0}, 1.0, v{y0}')
            a(f'v_add_f32 v{y1}, 1.0, v{y1}')
            a(f'v_rcp_f32 v{y0}, v{y0}')
            a(f'v_rcp_f32 v{y1}, v{y1}')
            a('s_nop 0')
            a(f'v_mul_f32 v{x0}, v{x0}, v{y0}')
            a(f'v_mul_f32 v{x1}, v{x1}, v{y1}')
            a(f'v_cvt_pk_bf16_f32 v{t}, v{x0}, v{x1}')
            a(f'v_lshlrev_b32 v{x0}, 16, v{t}')
            a(f'v_and_b32 v{x1}, 0xffff0000, v{t}')
            a(f'v_cvt_pk_bf16_f32 v{t}, v{S0}, v{S0+1}')
            a(f'v_lshlrev_b32 v{y0}, 16, v{t}')
            a(f'v_and_b32 v{y1}, 0xffff0000, v{t}')
            a(f'v_mul_f32 v{x0}, v{x0}, v{y0}')
            a(f'v_mul_f32 v{x1}, v{x1}, v{y1}')
            a(f'v_cvt_pk_bf16_f32 v{t}, v{x0}, v{x1}')
            a(f'v_lshlrev_b32 v{x0}, 16, v{t}')
            a(f'v_and_b32 v{x1}, 0xffff0000, v{t}')
            a(f'v_lshlrev_b32 v{y0}, 16, v{XR+2*c+p}')
            a(f'v_and_b32 v{y1}, 0xffff0000, v{XR+2*c+p}')
            a(f'v_add_f32 v{x0}, v{x0}, v{y0}')
            a(f'v_add_f32 v{x1}, v{x1}, v{y1}')
            a(f'v_cvt_pk_bf16_f32 v{8+2*c+p}, v{x0}, v{x1}')
        a(f'buffer_store_dwordx2 v[{8+2*c}:{9+2*c}], v202, s[28:31], s3 offen offset:{32*c}')
    a.label('K4_done')
    a('s_endpgm')
    return name, dict(vgpr=416, accum=256, grid=256, block=256, lds=122880)
```

```python
from fw import *
import struct, os
def f2u(x): return struct.unpack('<I', struct.pack('<f', x))[0]
CEXP = f2u((128 ** -0.5) * 1.4426950408889634)
DIAG = int(os.environ.get('DIAG', '0'))
DBGT = 0x8000000
PACE = int(os.environ.get('PACE', '0'))
DPOS = int(os.environ.get('DPOS', '0'))
DSLP = int(os.environ.get('DSLP', '8'))
SLOT = 5120
DUMP = 15360
KVB = 16384
def stamp(a, i):
    if DIAG: a(f's_memrealtime s[{64+2*i}:{65+2*i}]')
def flush(a, adj=0):
    if DIAG:
        a('s_waitcnt lgkmcnt(0)')
        a('s_mov_b64 s[90:91], exec')
        a('s_mov_b64 exec, 1')
        a('s_lshl_b32 s88, s40, 5'); a('s_add_u32 s88, s88, s41'); a('s_lshl_b32 s88, s88, 3'); a('s_add_u32 s88, s88, s33')
        a('s_lshl_b32 s88, s88, 6'); a('s_add_u32 s88, s88, s43'); a(f's_sub_u32 s88, s88, {adj}'); a('s_lshl_b32 s88, s88, 5')
        a('v_mov_b32 v251, 0')
        for h in range(2):
            for i in range(4):
                a(f'v_mov_b32 v{252+i}, s{64+2*(4*h+i)}' if 4*h+i < 7 else 'v_mov_b32 v255, s44')
            a(f'buffer_store_dwordx4 v[252:255], v251, s[84:87], s88 offen offset:{16*h}')
            a('s_nop 1')
        a('s_mov_b64 exec, s[90:91]')

def xstore(a, instr):
    l1 = a.newlabel('XS'); l2 = a.newlabel('XD')
    a('s_cmp_lg_u32 s42, 0')
    a(f's_cbranch_scc1 {l1}')
    a(instr)
    a(f's_branch {l2}')
    a.label(l1)
    a(instr + ' sc1')
    a.label(l2)

def maxops(regs, t):
    regs = list(regs)
    ops = [f'v_max3_u32 v{t}, v{regs[0]}, v{regs[1]}, v{regs[2]}']
    i = 3
    while i + 1 < len(regs):
        ops.append(f'v_max3_u32 v{t}, v{t}, v{regs[i]}, v{regs[i+1]}'); i += 2
    if i < len(regs):
        ops.append(f'v_max_u32 v{t}, v{t}, v{regs[i]}')
    ops.append(f'v_cmp_eq_u32 vcc, -1, v{t}')
    return ops

def poll_setup(a, VL, vaddr, vlds, rel_sreg):
    a(f's_add_u32 s97, s40, s{rel_sreg}')
    a('s_add_u32 s97, s97, 1')
    a('s_and_b32 s97, s97, 7')
    a('s_lshl_b32 s98, s97, 4')
    a('s_add_u32 s98, s98, s41')
    a('s_mul_i32 s98, s98, 1280')
    a(f'v_add_u32 v{vaddr}, s98, v{VL}')
    a('s_mul_i32 s98, s97, 1280')
    a(f's_add_u32 s98, s98, {SLOT}')
    a(f'v_add_u32 v{vlds}, s98, v{VL}')

def touch_part(a, vaddrs, d, ahead):
    a(f's_add_u32 s98, s96, {163840*ahead}')
    for va in vaddrs:
        a(f'buffer_load_dwordx4 v[{d}:{d+3}], v{va}, s[92:95], s98 offen')
    a('s_mov_b64 exec, 0xffff')
    for va in vaddrs:
        a(f'buffer_load_dwordx4 v[{d}:{d+3}], v{va}, s[92:95], s98 offen offset:1024')
    a('s_mov_b64 exec, -1')

def poll_remote(a, tag, srcs, t, done):
    a.label(f'C_pr{tag}')
    for va, vl, d in srcs:
        a(f'buffer_load_dwordx4 v[{d}:{d+3}], v{va}, s[92:95], s96 offen sc1')
    a('s_mov_b64 exec, 0xffff')
    for va, vl, d in srcs:
        a(f'buffer_load_dwordx4 v[{d+4}:{d+7}], v{va}, s[92:95], s96 offen offset:1024 sc1')
    a('s_mov_b64 exec, -1')
    a('s_waitcnt vmcnt(0)')
    regs = [r for va, vl, d in srcs for r in range(d, d+8)]
    for o in maxops(regs, t): a(o)
    a(f's_cbranch_vccz C_pk{tag}')
    a('s_sub_u32 s44, s44, 1')
    a(f's_cbranch_scc0 C_pr{tag}')
    a(f's_branch {done}')
    a.label(f'C_pk{tag}')
    for va, vl, d in srcs:
        a(f'ds_write_b128 v{vl}, v[{d}:{d+3}]')
    a('s_mov_b64 exec, 0xffff')
    for va, vl, d in srcs:
        a(f'ds_write_b128 v{vl}, v[{d+4}:{d+7}] offset:1024')
    a('s_mov_b64 exec, -1')
    a('s_add_u32 s96, s96, 163840')
    a('s_waitcnt lgkmcnt(0)')
    a('s_barrier')

def chain_body(a, done, kvwait=None):
    a('s_mov_b32 s43, 0')
    if DIAG:
        srd(a, 84, 58, DBGT, 256*8*64*32)
    a('s_cmp_lt_u32 s33, 4')
    a('s_cbranch_scc1 C_attn')
    a('s_cmp_eq_u32 s33, 7')
    a('s_cbranch_scc1 C_red')
    MF, AC, VL = 160, 200, 216
    a('s_cmp_eq_u32 s33, 4')
    a('s_cselect_b32 s4, s48, s50'); a('s_cselect_b32 s5, s49, s51')
    a('s_cmp_eq_u32 s33, 6')
    a('s_cselect_b32 s4, s52, s4'); a('s_cselect_b32 s5, s53, s5')
    a(f's_mov_b32 s6, {640*8192}'); a('s_mov_b32 s7, 0x20000')
    a('s_lshr_b32 s46, s41, 2')
    a('s_lshl_b32 s3, s40, 2')
    a('s_add_u32 s46, s46, s3')
    a('s_and_b32 s47, s41, 3')
    a(f'v_lshlrev_b32 v{VL}, 4, v0')
    a('s_lshl_b32 s3, s46, 8')
    a('s_lshl_b32 s8, s47, 6')
    a('s_add_u32 s3, s3, s8')
    a('v_lshrrev_b32 v240, 2, v0')
    a('v_lshlrev_b32 v240, 13, v240')
    a('v_and_b32 v239, 3, v0')
    a('v_lshl_add_u32 v240, v239, 4, v240')
    a('v_add_u32 v240, s3, v240')
    a('s_sub_u32 s8, s33, 4')
    a('s_mul_i32 s8, s8, 20480')
    a(f's_add_u32 s8, s8, {KVB}')
    a('v_lshrrev_b32 v238, 4, v0')
    a('v_bfe_u32 v237, v0, 2, 2')
    a('v_lshl_add_u32 v238, v238, 3, v237')
    a('v_lshlrev_b32 v238, 6, v238')
    a('v_lshl_add_u32 v238, v239, 3, v238')
    a('v_add_u32 v238, s8, v238')
    for half in range(2):
        for j in range(20):
            a(f's_add_u32 m0, s8, {j*1024}')
            a(f's_mov_b32 s3, {(half*320 + j*16)*8192}')
            a('buffer_load_dwordx4 v240, s[4:7], s3 offen lds')
        a('s_waitcnt vmcnt(0)')
        for k2 in range(10):
            kk = half*10 + k2
            for z in range(2):
                r = (kk*2+z)*4
                a(f'ds_read_b64_tr_b16 v[{r}:{r+1}], v238 offset:{k2*2048 + 32*z}')
                a(f'ds_read_b64_tr_b16 v[{r+2}:{r+3}], v238 offset:{k2*2048 + 256 + 32*z}')
        a('s_waitcnt lgkmcnt(0)')
    a('s_barrier')
    srd(a, 8, 58, MEMB, 64*MEMSLOT)
    a('s_mul_i32 s16, s40, 10240')
    a('s_cmp_eq_u32 s33, 6')
    a('s_cbranch_scc1 C_vsetup')
    srd(a, 12, 58, CQK, 64*32*4096)
    a('s_lshl_b32 s3, s47, 10')
    a('s_sub_u32 s17, s33, 4'); a('s_lshl_b32 s17, s17, 7'); a('s_add_u32 s3, s3, s17')
    a('s_lshl_b32 s17, s46, 12'); a('s_add_u32 s3, s3, s17')
    a('s_mov_b32 s18, 131072')
    a('s_mov_b32 s20, 0x00ff00ff'); a('s_mov_b32 s21, 0x00ff00ff')
    a('s_branch C_qkv_go')
    a.label('C_vsetup')
    srd(a, 12, 58, CV, 64*32*2048)
    a('s_lshl_b32 s3, s47, 9')
    a('s_lshl_b32 s17, s46, 11'); a('s_add_u32 s3, s3, s17')
    a('s_mov_b32 s18, 65536')
    a('s_mov_b32 s20, -1'); a('s_mov_b32 s21, 0')
    a.label('C_qkv_go')
    a(f'v_add_u32 v217, s3, v{VL}')
    a(f'v_add_u32 v218, 4096, v{VL}')
    a(f'v_add_u32 v219, 8192, v{VL}')
    a('s_setprio 2')
    a('s_mov_b32 s17, 0')
    srd(a, 24, 58, KF, 0x2000000)
    a('s_lshl_b32 s28, s40, 14')
    a('s_lshl_b32 s29, s40, 15')
    a('s_add_u32 s29, s29, 0x1000000')
    def frag_rel(q):
        head, f, isv = q >> 4, q & 7, (q >> 3) & 1
        return isv, (head*8192 + f*1024 if isv else head*4096 + (f >> 2)*131072 + (f & 3)*1024)
    def dma_kv(tag):
        rng = [(0, 22), (22, 43), (43, 64)]
        for m in range(3):
            if tag[0] == 'V' and m < 2: continue
            if tag[0] == 'Q' and m == 2: continue
            if tag[0] != 'V' and m < (1 if tag[0] == 'Q' else 2):
                a(f's_cmp_lg_u32 s33, {4+m}')
                a(f's_cbranch_scc1 C_dma{tag}{m+1}')
            for q in range(*rng[m]):
                isv, rel = frag_rel(q)
                a(f's_mov_b32 m0, {KVB + q*1024}')
                a(f's_add_u32 s34, s{29 if isv else 28}, {rel}')
                a(f'buffer_load_dwordx4 v{VL}, s[24:27], s34 offen sc1 lds')
                if PACE and tag != '0': a(f's_sleep {PACE}')
            a(f's_branch C_dmae{tag}')
            a.label(f'C_dma{tag}{m+1}')
        a.label(f'C_dmae{tag}')
        a('s_add_u32 s28, s28, 262144')
        a('s_add_u32 s29, s29, 262144')
    a('s_lshl_b32 s31, s41, 2')
    a('s_lshl_b32 s3, s33, 1')
    a('s_add_u32 s31, s31, s3')
    a('s_sub_u32 s31, s31, 8')
    a('s_lshr_b32 s34, s31, 4')
    a('s_and_b32 s35, s31, 7')
    a('s_bfe_u32 s31, s31, 0x10003')
    a('s_lshl_b32 s30, s34, 13')
    a('s_lshl_b32 s36, s35, 10')
    a('s_add_u32 s30, s30, s36')
    a('s_lshl_b32 s34, s34, 12')
    a('s_lshr_b32 s36, s35, 2'); a('s_lshl_b32 s36, s36, 17'); a('s_add_u32 s34, s34, s36')
    a('s_and_b32 s36, s35, 3'); a('s_lshl_b32 s36, s36, 10'); a('s_add_u32 s34, s34, s36')
    a('s_cmp_eq_u32 s31, 0')
    a('s_cmov_b32 s30, s34')
    def warm(tag, ahead):
        a('s_cmp_eq_u32 s33, 6')
        a(f's_cbranch_scc1 C_wd{tag}')
        a('s_cmp_eq_u32 s31, 0')
        a('s_cselect_b32 s34, s28, s29')
        a('s_add_u32 s34, s34, s30')
        a(f's_add_u32 s34, s34, {262144*ahead}')
        a(f'buffer_load_dwordx4 v[232:235], v{VL}, s[24:27], s34 offen')
        a(f'buffer_load_dwordx4 v[232:235], v{VL}, s[24:27], s34 offen offset:1024')
        a.label(f'C_wd{tag}')
    srd(a, 60, 58, MEMB, PART - MEMB)
    a('s_lshl_b32 s36, s41, 10')
    a('s_lshl_b32 s37, s40, 14'); a('s_add_u32 s37, s37, s36'); a(f's_add_u32 s37, s37, {CQK - MEMB}')
    a('s_lshl_b32 s38, s40, 13'); a('s_add_u32 s38, s38, s36'); a(f's_add_u32 s38, s38, {CV - MEMB}')
    a('s_mov_b32 s39, 65536')
    a('s_mul_i32 s100, s40, 10240'); a('s_add_u32 s100, s100, s36')
    a('s_cmp_lt_u32 s41, 8')
    a('s_cbranch_scc1 C_tch_ok')
    a('s_sub_u32 s38, s100, 8192')
    a(f's_mov_b32 s39, {MEMSLOT}')
    a.label('C_tch_ok')
    a('s_add_u32 s100, s100, 8192')
    def touch_x(tag):
        a('s_cmp_lg_u32 s33, 6')
        a(f's_cbranch_scc1 C_tx{tag}')
        a(f'buffer_load_dwordx4 v[232:235], v{VL}, s[60:63], s37 offen')
        a(f'buffer_load_dwordx4 v[232:235], v{VL}, s[60:63], s38 offen')
        a('s_add_u32 s37, s37, 131072')
        a('s_add_u32 s38, s38, s39')
        a('s_cmp_gt_u32 s41, 1')
        a(f's_cbranch_scc1 C_tx{tag}')
        a(f'buffer_load_dwordx4 v[232:235], v{VL}, s[60:63], s100 offen')
        a(f's_add_u32 s100, s100, {MEMSLOT}')
        a.label(f'C_tx{tag}')
    touch_x('a'); touch_x('b')
    if kvwait: kvwait(a, 'i')
    warm('a', 1); warm('b', 2)
    dma_kv('0')
    a('s_waitcnt vmcnt(0)')
    a('s_barrier')
    def mload(j):
        a(f'buffer_load_dwordx4 v[{MF+4*j}:{MF+3+4*j}], v{VL if j < 4 else 218 if j < 8 else 219}, s[8:11], s16 offen offset:{1024*(j%4)} sc1')
    for isV in (False, True):
        sfx = 'V' if isV else 'Q'
        if not isV:
            a('s_cmp_eq_u32 s33, 6')
            a('s_cbranch_scc1 C_qkv_loopV')
        a.label(f'C_qkv_loop{sfx}')
        stamp(a, 0)
        for j in range(10):
            mload(j)
        def chk(g): return maxops(range(MF+8*g, MF+8+8*g), 222)
        def mm(kk, z):
            j = kk >> 1
            D = AC + (z*2 + (kk & 1))*4
            W = (kk*2+z)*4
            C = '0' if kk < 2 else f'v[{D}:{D+3}]'
            if isV:
                a(f'v_mfma_f32_16x16x32_bf16 v[{D}:{D+3}], v[{MF+4*j}:{MF+3+4*j}], v[{W}:{W+3}], {C}')
            else:
                a(f'v_mfma_f32_16x16x32_bf16 v[{D}:{D+3}], v[{W}:{W+3}], v[{MF+4*j}:{MF+3+4*j}], {C}')
        a.label(f'C_qchk{sfx}0')
        a('s_waitcnt vmcnt(8)')
        for o in chk(0): a(o)
        a(f's_cbranch_vccnz C_qret{sfx}0')
        stamp(a, 1)
        for g in range(5):
            a.label(f'C_qmm{sfx}{g}')
            seq = [(4*g+i, z) for i in range(4) for z in range(2)]
            for n, (kk, z) in enumerate(seq):
                mm(kk, z)
                if g < 4:
                    ops = chk(g+1)
                    if n == 3: a(f's_waitcnt vmcnt({2*(3-g)})')
                    if n == 4: a(ops[0]); a(ops[1])
                    if n == 5: a(ops[2]); a(ops[3])
                    if n == 6: a(ops[4])
            if g < 4:
                a(f's_cbranch_vccnz C_qret{sfx}{g+1}')
                if g == 3: stamp(a, 2)
        a('s_nop 6')
        for z in range(2):
            D1, D2 = AC + z*8, AC + z*8 + 4
            if isV:
                for r in range(4):
                    a(f'v_permlane32_swap_b32 v{D2+r}, v{224+r}')
                for r in range(4):
                    a(f'v_add_f32 v{D1+r}, v{D1+r}, v{224+r}')
            else:
                for r in range(4):
                    a(f'v_add_f32_dpp v{D1+r}, v{D2+r}, v{D1+r} row_ror:8 row_mask:0xf bank_mask:0xf')
        for z in range(2):
            D1 = AC + z*8
            a(f'v_cvt_pk_bf16_f32 v{224+2*z}, v{D1}, v{D1+1}')
            a(f'v_cvt_pk_bf16_f32 v{225+2*z}, v{D1+2}, v{D1+3}')
        for r in range(4):
            a(f'v_min_u32 v{224+r}, -2, v{224+r}')
        a('s_mov_b64 exec, s[20:21]')
        xstore(a, 'buffer_store_dwordx4 v[224:227], v217, s[12:15], s17 offen')
        a('s_mov_b64 exec, -1')
        stamp(a, 3)
        a('s_add_u32 s43, s43, 1')
        a('s_cmp_ge_u32 s43, 64')
        a(f's_cbranch_scc1 {done}')
        a('s_add_u32 s17, s17, s18')
        a(f's_add_u32 s16, s16, {MEMSLOT}')
        a('s_barrier')
        if DPOS == 1: a('s_barrier')
        a('s_setprio 0')
        if DPOS == 0: a(f's_sleep {DSLP}')
        stamp(a, 4)
        if kvwait: kvwait(a, sfx)
        dma_kv(sfx)
        touch_x(sfx)
        warm(sfx, 1)
        stamp(a, 5)
        a('s_setprio 2')
        if DPOS == 0: a('s_barrier')
        a('s_barrier')
        a('s_waitcnt vmcnt(0)')
        flush(a, 1)
        a('s_barrier')
        a(f's_branch C_qkv_loop{sfx}')
        for g in range(5):
            a.label(f'C_qret{sfx}{g}')
            a('s_sub_u32 s44, s44, 1')
            a(f's_cbranch_scc1 {done}')
            a('s_waitcnt vmcnt(0)')
            for j in range(2*g, 10):
                mload(j)
            if g == 0:
                a(f's_branch C_qchk{sfx}0')
            else:
                a(f's_waitcnt vmcnt({2*(4-g)})')
                for o in chk(g): a(o)
                a(f's_cbranch_vccz C_qmm{sfx}{g}')
                a(f's_branch C_qret{sfx}{g}')

    a.label('C_red')
    srd(a, 8, 58, PART, 64*163840)
    srd(a, 12, 58, MEMB, 64*MEMSLOT)
    a('v_lshlrev_b32 v1, 4, v0')
    a('s_lshl_b32 s3, s40, 4'); a('s_add_u32 s3, s3, s41'); a('s_mul_i32 s3, s3, 1280')
    a('v_add_u32 v3, s3, v1')
    a('s_mul_i32 s3, s40, 1280'); a(f's_add_u32 s3, s3, {SLOT}')
    a('v_add_u32 v7, s3, v1')
    a('s_mul_i32 s16, s40, 10240')
    for P_, add in ((4, 0), (5, 8)):
        a('v_lshrrev_b32 v8, 3, v0')
        if add: a(f'v_add_u32 v8, {add}, v8')
        a('s_mul_i32 s3, s41, 40')
        a('v_lshl_add_u32 v8, v8, 2, s3')
        a(f'v_and_b32 v{P_}, 7, v0')
        a(f'v_lshlrev_b32 v{P_}, 4, v{P_}')
        a('v_lshrrev_b32 v6, 6, v8');  a(f'v_lshl_add_u32 v{P_}, v6, 10, v{P_}')
        a('v_bfe_u32 v6, v8, 3, 2');   a(f'v_lshl_add_u32 v{P_}, v6, 8, v{P_}')
        a('v_bfe_u32 v6, v8, 5, 1');   a(f'v_lshl_add_u32 v{P_}, v6, 7, v{P_}')
        a('v_bfe_u32 v6, v8, 2, 1');   a(f'v_lshl_add_u32 v{P_}, v6, 3, v{P_}')
        a(f'v_add_u32 v{P_}, s16, v{P_}')
    srd(a, 92, 58, PART, 64*163840)
    a('s_mov_b32 s96, 0')
    a('s_mov_b32 s3, 6')
    poll_setup(a, 1, 112, 113, 3)
    for r in range(4): a(f'v_mov_b32 v{120+r}, 0')
    touch_part(a, [112], 124, 0); touch_part(a, [112], 124, 1)
    a('s_mov_b32 s16, 0')
    a(f's_mov_b32 s17, {MEMSLOT}')
    a('s_setprio 3')
    a('s_barrier')
    a('s_barrier')
    a.label('C_red_loop')
    a('s_barrier')
    a('s_barrier')
    stamp(a, 0)
    for w in range(4):
        a(f'ds_read_b128 v[{16+4*w}:{19+4*w}], v1 offset:{1280*w}')
    for w in range(4):
        a(f'ds_read_b128 v[{32+4*w}:{35+4*w}], v1 offset:{1280*w+1024}')
    for b, n in ((16, 4), (32, 0)):
        a(f's_waitcnt lgkmcnt({n})')
        for r in range(4):
            a(f'v_add_f32 v{b+r}, v{b+r}, v{b+4+r}')
            a(f'v_add_f32 v{b+8+r}, v{b+8+r}, v{b+12+r}')
        for r in range(4):
            a(f'v_add_f32 v{b+r}, v{b+r}, v{b+8+r}')
        for r in range(4):
            a(f'v_min_u32 v{b+r}, -2, v{b+r}')
        if b == 32: a('s_mov_b64 exec, 0xffff')
        a(f'buffer_store_dwordx4 v[{b}:{b+3}], v3, s[8:11], s16 offen offset:{0 if b == 16 else 1024} sc1')
    stamp(a, 1)
    a('ds_write_b128 v7, v[32:35] offset:1024')
    a('s_mov_b64 exec, -1')
    a('ds_write_b128 v7, v[16:19]')
    poll_remote(a, 'R', [(112, 113, 116)], 114, done)
    stamp(a, 2)
    for xx in range(8):
        a(f'ds_read_b128 v[{48+4*xx}:{51+4*xx}], v1 offset:{SLOT+1280*xx}')
    for xx in range(8):
        a(f'ds_read_b128 v[{80+4*xx}:{83+4*xx}], v1 offset:{SLOT+1280*xx+1024}')
    for b, o, ad, base_cnt in ((48, 20, 4, 8), (80, 28, 5, 0)):
        for xx in range(1, 8):
            a(f's_waitcnt lgkmcnt({base_cnt+7-xx})')
            for r in range(4):
                a(f'v_add_f32 v{o+r}, v{b+r if xx == 1 else o+r}, v{b+4*xx+r}')
        a(f'v_cvt_pk_bf16_f32 v{o+4}, v{o}, v{o+1}')
        a(f'v_cvt_pk_bf16_f32 v{o+5}, v{o+2}, v{o+3}')
        a(f'v_min_u32 v{o+4}, -2, v{o+4}')
        a(f'v_min_u32 v{o+5}, -2, v{o+5}')
        if b == 80: a('s_mov_b64 exec, 0xffff')
        xstore(a, f'buffer_store_dwordx2 v[{o+4}:{o+5}], v{ad}, s[12:15], s17 offen')
    a('s_mov_b64 exec, -1')
    stamp(a, 3)
    a('s_barrier')
    touch_part(a, [112], 124, 1)
    flush(a)
    a('s_add_u32 s43, s43, 1')
    a('s_cmp_ge_u32 s43, 63')
    a(f's_cbranch_scc1 {done}')
    a('s_add_u32 s16, s16, 163840')
    a(f's_add_u32 s17, s17, {MEMSLOT}')
    a('s_branch C_red_loop')

    KX, VX, WO, Q, VM, S, BIAS, P, O, OB, RR = 0, 32, 64, 112, 128, 144, 156, 160, 168, 200, 216
    VL = 228
    a.label('C_attn')
    a('s_lshl_b32 s46, s40, 2')
    a('s_add_u32 s46, s46, s33')
    a(f'v_lshlrev_b32 v{VL}, 4, v0')
    srd(a, 4, 54, 0, 4096*1280)
    a('s_mul_i32 s3, s46, 163840')
    a('s_mul_i32 s8, s41, 80')
    a('s_add_u32 s3, s3, s8')
    a('s_mul_i32 s8, s33, 12288')
    a('s_add_u32 s8, s8, 81920')
    a('s_mov_b32 s9, 0x2aaaaaab')
    for j in range(12):
        a(f'v_add_u32 v240, {64*j}, v0')
        a('v_mul_hi_u32 v241, v240, s9')
        a('v_mul_u32_u24 v242, 6, v241')
        a('v_sub_u32 v242, v240, v242')
        a('v_mul_u32_u24 v241, 1280, v241')
        a('v_lshl_add_u32 v241, v242, 4, v241')
        a(f's_add_u32 m0, s8, {j*1024}')
        a('s_nop 0')
        a('buffer_load_dwordx4 v241, s[4:7], s3 offen lds')
    a('v_lshrrev_b32 v238, 2, v0')
    a('v_mul_u32_u24 v238, 96, v238')
    a('v_and_b32 v239, 3, v0')
    a('v_lshl_add_u32 v238, v239, 3, v238')
    a('v_add_u32 v238, s8, v238')
    a('s_waitcnt vmcnt(0)')
    for tile in range(3):
        for u in range(4):
            r = WO + (tile*4+u)*4
            a(f'ds_read_b64_tr_b16 v[{r}:{r+1}], v238 offset:{u*3072 + tile*32}')
            a(f'ds_read_b64_tr_b16 v[{r+2}:{r+3}], v238 offset:{u*3072 + 1536 + tile*32}')
    a('s_waitcnt lgkmcnt(0)')
    a('s_barrier')
    srd(a, 16, 58, CQK, 64*32*4096)
    srd(a, 20, 58, CV, 64*32*2048)
    a('s_lshl_b32 s3, s33, 14')
    a(f's_add_u32 s3, s3, {KVB}')
    a(f'v_add_u32 v229, s3, v{VL}')
    a('v_and_b32 v230, 31, v0')
    a('v_lshlrev_b32 v230, 4, v230')
    a('v_and_b32 v240, 7, v0')
    a('v_lshlrev_b32 v240, 4, v240')
    a('v_lshrrev_b32 v241, 4, v0')
    a('v_lshl_add_u32 v240, v241, 7, v240')
    a('s_mul_i32 s3, s33, 1280')
    a('v_add_u32 v240, s3, v240')
    a(f'v_add_u32 v242, {DUMP}, v{VL}')
    a('v_and_b32 v241, 15, v0')
    a('v_cmp_gt_u32 vcc, 8, v241')
    a('v_cmp_gt_u32 s[10:11], 32, v0')
    a('s_and_b64 s[10:11], s[10:11], vcc')
    a('v_add_u32 v241, 512, v240')
    a('v_add_u32 v243, 1024, v240')
    a('v_cndmask_b32 v231, v242, v240, vcc')
    a('v_cndmask_b32 v232, v242, v241, vcc')
    a('v_cndmask_b32 v233, v242, v243, s[10:11]')
    a('v_mov_b32 v234, 0xf149f2ca')
    a('v_cmp_gt_u32 vcc, 32, v0')
    a('s_nop 1')
    for r in range(4):
        a(f'v_cndmask_b32 v{BIAS+r}, 0, v234, vcc')
    for r in range(16):
        a(f'v_mov_b32 v{VM+r}, 0')
    a('s_lshl_b32 s26, s46, 12')
    a('s_lshl_b32 s27, s46, 11')
    a(f's_mov_b32 s28, 0x{CEXP:x}')
    srd(a, 92, 58, PART, 64*163840)
    a('s_mov_b32 s96, 0')
    poll_setup(a, VL, 237, 238, 33)
    a('s_add_u32 s3, s33, 4')
    poll_setup(a, VL, 166, 167, 3)
    for r in range(4): a(f'v_mov_b32 v{244+r}, 0')
    touch_part(a, [237, 166], 248, 0); touch_part(a, [237, 166], 248, 1)
    def prefetch():
        for f in range(16):
            a(f'ds_read_b128 v[{KX+4*f}:{KX+4*f+3}], v229 offset:{f*1024}')
        a('s_waitcnt lgkmcnt(0)')
    def ld_qk():
        for u in range(4):
            a(f'buffer_load_dwordx4 v[{Q+4*u}:{Q+4*u+3}], v{VL}, s[16:19], s26 offen offset:{u*1024} sc1')
    def ld_vm():
        a('s_mov_b32 exec_lo, 0')
        for u in range(4):
            a(f'buffer_load_dwordx4 v[{VM+4*u}:{VM+4*u+3}], v230, s[20:23], s27 offen offset:{u*512} sc1')
        a('s_mov_b32 exec_lo, -1')
    a('s_setprio 1')
    a('s_barrier')
    prefetch()
    a.label('C_at_loop')
    a('s_barrier')
    stamp(a, 0)
    ld_qk()
    ld_vm()
    a.label('C_at_chk')
    a('s_waitcnt vmcnt(4)')
    m_, t_, l_ = 234, 235, 236
    for o in maxops(range(Q, Q+16), m_): a(o)
    a('s_cbranch_vccnz C_at_ret')
    stamp(a, 1)
    def smm(t3, u):
        A = (KX + (t3*4+u)*4) if t3 < 2 else Q + 4*u
        acc = S + 4*t3
        C = (f'v[{BIAS}:{BIAS+3}]' if t3 == 2 else '0') if u == 0 else f'v[{acc}:{acc+3}]'
        a(f'v_mfma_f32_16x16x32_bf16 v[{acc}:{acc+3}], v[{A}:{A+3}], v[{Q+4*u}:{Q+4*u+3}], {C}')
    for u in range(4): smm(0, u)
    a('s_waitcnt vmcnt(0)')
    vops = maxops(range(VM, VM+16), t_)
    for u in range(4):
        smm(1, u)
        a(vops[2*u]); a(vops[2*u+1])
    a(vops[8])
    a('s_cbranch_vccnz C_at_vret')
    a.label('C_at_vok')
    stamp(a, 3)
    smm(2, 0)
    a(f'v_max3_f32 v{m_}, v{S}, v{S+1}, v{S+2}')
    smm(2, 1)
    a(f'v_max_f32 v{m_}, v{m_}, v{S+3}')
    smm(2, 2)
    smm(2, 3)
    a('s_nop 3')
    a(f'v_max3_f32 v{m_}, v{m_}, v{S+4}, v{S+5}')
    a(f'v_max3_f32 v{m_}, v{m_}, v{S+6}, v{S+7}')
    a('s_nop 1')
    a(f'v_max3_f32 v{m_}, v{m_}, v{S+8}, v{S+9}')
    a(f'v_max3_f32 v{m_}, v{m_}, v{S+10}, v{S+11}')
    for sw in ('32', '16'):
        a(f'v_mov_b32 v{t_}, v{m_}')
        a('s_nop 1')
        a(f'v_permlane{sw}_swap_b32 v{m_}, v{t_}')
        a(f'v_max_f32 v{m_}, v{m_}, v{t_}')
    a(f'v_mul_f32 v{m_}, s28, v{m_}')
    for i in range(8):
        a(f'v_fma_f32 v{S+i}, v{S+i}, s28, -v{m_}')
    for i in range(8):
        a(f'v_exp_f32 v{S+i}, v{S+i}')
    for i in range(8, 12):
        a(f'v_fma_f32 v{S+i}, v{S+i}, s28, -v{m_}')
    for i in range(4):
        a(f'v_cvt_pk_bf16_f32 v{P+i}, v{S+2*i}, v{S+2*i+1}')
    def pvx(ct): a(f'v_mfma_f32_16x16x32_bf16 v[{O+4*ct}:{O+4*ct+3}], v[{VX+4*ct}:{VX+4*ct+3}], v[{P}:{P+3}], 0')
    def pvm(ct): a(f'v_mfma_f32_16x16x16_bf16 v[{O+4*ct}:{O+4*ct+3}], v[{VM+2*ct}:{VM+2*ct+1}], v[{P+4}:{P+5}], v[{O+4*ct}:{O+4*ct+3}]')
    def cvo(u2):
        for hh in range(2):
            o = O + 4*(2*u2+hh)
            a(f'v_cvt_pk_bf16_f32 v{OB+4*u2+2*hh}, v{o}, v{o+1}')
            a(f'v_cvt_pk_bf16_f32 v{OB+4*u2+2*hh+1}, v{o+2}, v{o+3}')
    def wom(uu):
        for tile in range(3):
            C = '0' if uu == 0 else f'v[{RR+4*tile}:{RR+4*tile+3}]'
            a(f'v_mfma_f32_16x16x32_bf16 v[{RR+4*tile}:{RR+4*tile+3}], v[{WO+(tile*4+uu)*4}:{WO+(tile*4+uu)*4+3}], v[{OB+4*uu}:{OB+4*uu+3}], {C}')
    def ad(i): a(f'v_add_f32 v{l_}, v{l_}, v{S+i}')
    a(f'v_exp_f32 v{S+8}, v{S+8}')
    a(f'v_exp_f32 v{S+9}, v{S+9}')
    pvx(0)
    a(f'v_exp_f32 v{S+10}, v{S+10}')
    pvx(1)
    a(f'v_exp_f32 v{S+11}, v{S+11}')
    pvx(2)
    a(f'v_cvt_pk_bf16_f32 v{P+4}, v{S+8}, v{S+9}')
    a(f'v_cvt_pk_bf16_f32 v{P+5}, v{S+10}, v{S+11}')
    pvx(3)
    a(f'v_add_f32 v{l_}, v{S}, v{S+1}'); ad(2); ad(3)
    pvm(0); ad(4); ad(5)
    pvm(1); ad(6); ad(7)
    pvm(2); ad(8); ad(9)
    pvm(3); ad(10); ad(11)
    pvx(4)
    a(f'v_mov_b32 v{t_}, v{l_}')
    pvx(5)
    cvo(0)
    pvx(6)
    a(f'v_permlane32_swap_b32 v{l_}, v{t_}')
    pvx(7)
    cvo(1)
    pvm(4)
    a(f'v_add_f32 v{l_}, v{l_}, v{t_}')
    pvm(5)
    a(f'v_mov_b32 v{t_}, v{l_}')
    pvm(6)
    pvm(7)
    wom(0)
    a(f'v_permlane16_swap_b32 v{l_}, v{t_}')
    a(f'v_add_f32 v{l_}, v{l_}, v{t_}')
    wom(1)
    a(f'v_rcp_f32 v{l_}, v{l_}')
    cvo(2)
    cvo(3)
    wom(2)
    wom(3)
    a('s_nop 5')
    for r in range(12):
        a(f'v_mul_f32 v{RR+r}, v{RR+r}, v{l_}')
    for tile in range(3):
        a(f'ds_write_b128 v{231+tile}, v[{RR+4*tile}:{RR+4*tile+3}]')
    a('s_waitcnt lgkmcnt(0)')
    stamp(a, 4)
    a('s_barrier')
    a('s_cmp_gt_u32 s33, 1')
    a('s_cbranch_scc1 C_p1')
    for r in range(4): a(f'v_mov_b32 v{O+4+r}, 0')
    poll_remote(a, 'A2', [(237, 238, 240), (166, 167, O)], 239, done)
    touch_part(a, [237, 166], 248, 1)
    a('s_branch C_p1e')
    a.label('C_p1')
    poll_remote(a, 'A1', [(237, 238, 240)], 239, done)
    touch_part(a, [237], 248, 1)
    a.label('C_p1e')
    flush(a)
    a('s_add_u32 s43, s43, 1')
    a('s_cmp_ge_u32 s43, 63')
    a(f's_cbranch_scc1 {done}')
    a('s_add_u32 s26, s26, 131072')
    a('s_add_u32 s27, s27, 65536')
    a('s_barrier')
    prefetch()
    a('s_branch C_at_loop')
    a.label('C_at_ret')
    a('s_sub_u32 s44, s44, 1')
    a(f's_cbranch_scc1 {done}')
    a('s_waitcnt vmcnt(0)')
    ld_qk()
    ld_vm()
    a('s_branch C_at_chk')
    a.label('C_at_vret')
    a('s_sub_u32 s44, s44, 1')
    a(f's_cbranch_scc1 {done}')
    ld_vm()
    a('s_waitcnt vmcnt(0)')
    for o in maxops(range(VM, VM+16), t_): a(o)
    a('s_cbranch_vccz C_at_vok')
    a('s_branch C_at_vret')

def register(a, done):
    a(f's_load_dwordx8 s[48:55], s[0:1], {KA["Wq"]}')
    a(f's_load_dwordx4 s[56:59], s[0:1], {KA["dbg"]}')
    a('v_lshrrev_b32 v1, 6, v0')
    a('s_nop 0')
    a('v_readfirstlane_b32 s33, v1')
    a('v_and_b32 v0, 63, v0')
    a('s_mov_b32 s44, 0x400000')
    a('s_waitcnt lgkmcnt(0)')
    a('s_cmp_lg_u32 s33, 0')
    a('s_cbranch_scc1 R_wait_role')
    srd(a, 4, 58, CNT + 272*128, 1024)
    a('s_getreg_b32 s40, hwreg(HW_REG_XCC_ID)')
    a('s_and_b32 s40, s40, 7')
    a('s_mov_b64 exec, 1')
    a('s_lshl_b32 s3, s40, 7')
    a('v_mov_b32 v1, s3')
    a('v_mov_b32 v2, 1')
    a('buffer_atomic_add v2, v1, s[4:7], 0 offen sc0')
    a('s_waitcnt vmcnt(0)')
    a('v_readfirstlane_b32 s41, v2')
    a('s_mov_b64 exec, 0xff')
    a('v_lshlrev_b32 v1, 7, v0')
    a.label('R_poll')
    a('s_sub_u32 s44, s44, 1')
    a(f's_cbranch_scc1 {done}')
    a('buffer_load_dword v4, v1, s[4:7], 0 offen sc1')
    a('s_waitcnt vmcnt(0)')
    a('s_mov_b32 s3, 0')
    a('s_mov_b32 s45, 0')
    for i in range(8):
        a(f'v_readlane_b32 s8, v4, {i}')
        a(f's_cmp_gt_u32 s40, {i}')
        a('s_cselect_b32 s9, s8, 0')
        a('s_add_u32 s45, s45, s9')
        a('s_add_u32 s3, s3, s8')
    a('s_cmp_lt_u32 s3, 256')
    a('s_cbranch_scc1 R_poll')
    a('s_add_u32 s45, s45, s41')
    a('v_cmp_ne_u32 vcc, 32, v4')
    a('s_mov_b32 s42, 0')
    a('s_cmp_eq_u64 vcc, 0')
    a('s_cbranch_scc1 R_fast')
    a('s_mov_b32 s42, 1')
    a('s_lshr_b32 s40, s45, 5')
    a('s_and_b32 s41, s45, 31')
    a.label('R_fast')
    a('s_mov_b64 exec, 1')
    a('v_mov_b32 v4, s40'); a('v_mov_b32 v5, s41'); a('v_mov_b32 v6, s42'); a('v_mov_b32 v7, 0')
    a('v_mov_b32 v1, 0')
    a('ds_write_b128 v1, v[4:7]')
    a('s_waitcnt lgkmcnt(0)')
    a('s_mov_b64 exec, -1')
    a.label('R_wait_role')
    a('s_barrier')
    a('v_mov_b32 v1, 0')
    a('ds_read_b128 v[4:7], v1')
    a('s_waitcnt lgkmcnt(0)')
    a('v_readfirstlane_b32 s40, v4')
    a('v_readfirstlane_b32 s41, v5')
    a('v_readfirstlane_b32 s42, v6')
    a('s_and_b32 s40, s40, 7')
    a('s_and_b32 s41, s41, 31')

def gen_k2(a):
    name = 'chain_kernel'
    kernel_begin(a, name)
    a('s_cmp_ge_u32 s2, 256')
    a('s_cbranch_scc1 K2_done')
    register(a, 'K2_done')
    a('s_cmp_ge_u32 s41, 16')
    a('s_cbranch_scc1 K2_done')
    chain_body(a, 'K2_done')
    a.label('K2_done')
    a('s_endpgm')
    return name, dict(vgpr=256, grid=256, block=512, lds=131072)
```

```python
class Asm:
    def __init__(self):
        self.lines = []
        self.uid = 0
    def __call__(self, s):
        for l in s.split('\n'):
            l = l.strip()
            if l:
                self.lines.append('    ' + l)
    def label(self, name):
        self.lines.append(name + ':')
    def newlabel(self, base='L'):
        self.uid += 1
        return f'{base}_{self.uid}'
    def comment(self, s):
        self.lines.append('    ; ' + s)
    def text(self):
        return '\n'.join(self.lines) + '\n'

def vr(b, n=1):
    return f'v{b}' if n == 1 else f'v[{b}:{b+n-1}]'
def ar(b, n=1):
    return f'a{b}' if n == 1 else f'a[{b}:{b+n-1}]'
def sr(b, n=1):
    return f's{b}' if n == 1 else f's[{b}:{b+n-1}]'

def R(b, n=1):
    if b >= 256:
        return ar(b-256, n)
    assert b + n <= 256
    return vr(b, n)

KA = dict(x=0, mem0=8, Wq=16, Wk=24, Wv=32, Wo=40, seg=48, Bx=56, w1=64, b1=72, w2=80, b2=88, out=96, dbg=104, ws=112)

XNF = 0x0
QF  = 0x0400000
KF  = 0x1400000
VF  = 0x2400000
HF  = 0x3400000
OF  = 0x3C00000
F0  = 0x4D00000
MEMSLOT = 81920
MEMB = F0 - MEMSLOT
CQK = F0 + 0x500000
CV  = F0 + 0xD00000
PART = F0 + 0x1100000
FILLSZ = 0x1B00000
WOF = 0x6800000
W2F = 0x6E00000

def srd(a, d, ptr_lo, off, size):
    if off:
        a(f's_add_u32 s{d}, s{ptr_lo}, 0x{off:x}')
        a(f's_addc_u32 s{d+1}, s{ptr_lo+1}, 0')
    else:
        a(f's_mov_b32 s{d}, s{ptr_lo}')
        a(f's_mov_b32 s{d+1}, s{ptr_lo+1}')
    a(f's_mov_b32 s{d+2}, 0x{size:x}')
    a(f's_mov_b32 s{d+3}, 0x20000')

def kernel_begin(a, name):
    a.lines.append('.text')
    a.lines.append(f'.globl {name}')
    a.lines.append('.p2align 8')
    a.lines.append(f'.type {name},@function')
    a.label(name)

def kernel_desc(a, name, vgpr, sgpr=102, accum=None):
    if accum is None:
        accum = min(256, (vgpr + 3)//4*4)
    a.lines.append('.section .rodata,"a"')
    a.lines.append('.p2align 6')
    a.lines.append(f'.amdhsa_kernel {name}')
    a.lines.append(f'  .amdhsa_next_free_vgpr {vgpr}')
    a.lines.append(f'  .amdhsa_next_free_sgpr {sgpr}')
    a.lines.append(f'  .amdhsa_accum_offset {accum}')
    a.lines.append('  .amdhsa_group_segment_fixed_size 0')
    a.lines.append('  .amdhsa_kernarg_size 120')
    a.lines.append('  .amdhsa_user_sgpr_count 2')
    a.lines.append('  .amdhsa_user_sgpr_kernarg_segment_ptr 1')
    a.lines.append('  .amdhsa_system_sgpr_workgroup_id_x 1')
    a.lines.append('  .amdhsa_float_denorm_mode_32 3')
    a.lines.append('.end_amdhsa_kernel')

CNT = 0x7200000
CNT_KV, CNT_Q, CNT_H, CNT_RL, CNT_O = 0, 128, 192, 200, 208
CNTSZ = 288*128
```

```python
from fw import *
def gen_k0(a):
    name = 'ln_init_kernel'
    kernel_begin(a, name)
    a('s_cmp_ge_u32 s2, 432')
    a('s_cbranch_scc1 K0_done')
    a(f's_load_dwordx2 s[4:5], s[0:1], {KA["x"]}')
    a(f's_load_dwordx2 s[6:7], s[0:1], {KA["mem0"]}')
    a(f's_load_dwordx2 s[8:9], s[0:1], {KA["ws"]}')
    a('s_waitcnt lgkmcnt(0)')
    srd(a, 12, 8, F0, FILLSZ)
    a('v_lshlrev_b32 v1, 4, v0')
    a('s_lshl_b32 s3, s2, 16')
    a('v_mov_b32 v4, -1'); a('v_mov_b32 v5, -1'); a('v_mov_b32 v6, -1'); a('v_mov_b32 v7, -1')
    for j in range(16):
        a(f'buffer_store_dwordx4 v[4:7], v1, s[12:15], s3 offen')
        if j < 15:
            a('s_add_u32 s3, s3, 4096')
    a('s_cmp_lg_u32 s2, 140')
    a('s_cbranch_scc1 K0_nz')
    srd(a, 12, 8, CNT, CNTSZ)
    a('v_mov_b32 v4, 0'); a('v_mov_b32 v5, 0'); a('v_mov_b32 v6, 0'); a('v_mov_b32 v7, 0')
    for j in range(10):
        a(f's_mov_b32 s3, {4096*j}')
        a(f'buffer_store_dwordx4 v[4:7], v1, s[12:15], s3 offen')
    a.label('K0_nz')
    a('s_cmp_lt_u32 s2, 128')
    a('s_cbranch_scc1 K0_ln')
    a('s_cmp_ge_u32 s2, 136')
    a('s_cbranch_scc1 K0_done')
    srd(a, 16, 6, 0, 10240)
    a('s_sub_u32 s3, s2, 128')
    a('s_mul_i32 s3, s3, 10240')
    a(f's_add_u32 s3, s3, 0x{MEMB:x}')
    a('s_add_u32 s20, s8, s3')
    a('s_addc_u32 s21, s9, 0')
    a('s_mov_b32 s22, 10240')
    a('s_mov_b32 s23, 0x20000')
    a('v_and_b32 v20, 7, v0')
    a('v_mul_u32_u24 v20, 1280, v20')
    a('v_bfe_u32 v21, v0, 3, 1')
    a('v_lshl_add_u32 v20, v21, 6, v20')
    a('v_bfe_u32 v21, v0, 4, 2')
    a('v_lshl_add_u32 v20, v21, 4, v20')
    a('v_lshrrev_b32 v21, 6, v0')
    a('v_lshl_add_u32 v20, v21, 7, v20')
    for j in range(3):
        a(f'buffer_load_dwordx4 v[{8+4*j}:{11+4*j}], v20, s[16:19], 0 offen offset:{512*j}')
    a('v_add_u32 v3, 4096, v1')
    a('v_add_u32 v4, 8192, v1')
    a('s_waitcnt vmcnt(0)')
    for r in range(8, 20):
        a(f'v_min_u32 v{r}, -2, v{r}')
    a('buffer_store_dwordx4 v[8:11], v1, s[20:23], 0 offen')
    a('buffer_store_dwordx4 v[12:15], v3, s[20:23], 0 offen')
    a('buffer_store_dwordx4 v[16:19], v4, s[20:23], 0 offen')
    a('s_branch K0_done')
    a.label('K0_ln')
    srd(a, 16, 4, 0, 2048*1280)
    srd(a, 20, 8, XNF, 128*20*1024)
    a('v_and_b32 v1, 63, v0')
    a('v_lshrrev_b32 v2, 6, v0')
    a('v_and_b32 v3, 15, v1')
    a('v_lshrrev_b32 v4, 4, v1')
    a('v_mul_u32_u24 v5, 1280, v3')
    a('v_lshl_add_u32 v5, v4, 3, v5')
    a('v_mul_u32_u24 v6, 320, v2')
    a('v_add_u32 v5, v5, v6')
    a('s_mul_i32 s3, s2, 20480')
    for kk in range(5):
        a(f'buffer_load_dwordx2 v[{10+4*kk}:{11+4*kk}], v5, s[16:19], s3 offen offset:{64*kk}')
        a(f'buffer_load_dwordx2 v[{12+4*kk}:{13+4*kk}], v5, s[16:19], s3 offen offset:{64*kk+32}')
    a('v_lshlrev_b32 v7, 6, v3')
    a('v_lshl_add_u32 v8, v2, 4, v7')
    a('v_lshl_add_u32 v8, v4, 2, v8')
    a('s_waitcnt vmcnt(0)')
    for i in range(20):
        a(f'v_lshlrev_b32 v{32+2*i}, 16, v{10+i}')
        a(f'v_and_b32 v{33+2*i}, 0xffff0000, v{10+i}')
    a('v_add_f32 v9, v32, v33')
    for i in range(34, 72):
        a(f'v_add_f32 v9, v9, v{i}')
    a('ds_write_b32 v8, v9')
    a('s_waitcnt lgkmcnt(0)')
    a('s_barrier')
    for j in range(4):
        a(f'ds_read_b128 v[{72+4*j}:{75+4*j}], v7 offset:{16*j}')
    a('s_waitcnt lgkmcnt(0)')
    a('v_add_f32 v9, v72, v73')
    for i in range(74, 88):
        a(f'v_add_f32 v9, v9, v{i}')
    a('v_mul_f32 v9, 0x3acccccd, v9')
    a('v_sub_f32 v30, v32, v9')
    a('v_mul_f32 v31, v30, v30')
    for i in range(33, 72):
        a(f'v_sub_f32 v30, v{i}, v9')
        a('v_fmac_f32 v31, v30, v30')
    a('ds_write_b32 v8, v31 offset:1024')
    a('s_waitcnt lgkmcnt(0)')
    a('s_barrier')
    for j in range(4):
        a(f'ds_read_b128 v[{72+4*j}:{75+4*j}], v7 offset:{1024+16*j}')
    a('s_waitcnt lgkmcnt(0)')
    a('v_add_f32 v31, v72, v73')
    for i in range(74, 88):
        a(f'v_add_f32 v31, v31, v{i}')
    a('v_mul_f32 v31, 0x3acccccd, v31')
    a('v_cvt_pk_bf16_f32 v30, v9, v31')
    a('v_lshlrev_b32 v9, 16, v30')
    a('v_and_b32 v31, 0xffff0000, v30')
    a('v_add_f32 v31, 0x3727c5ac, v31')
    a('v_cvt_pk_bf16_f32 v30, v31, v31')
    a('v_lshlrev_b32 v31, 16, v30')
    a('v_sqrt_f32 v31, v31')
    a('s_nop 0')
    a('v_cvt_pk_bf16_f32 v30, v31, v31')
    a('v_lshlrev_b32 v31, 16, v30')
    a('v_rcp_f32 v31, v31')
    a('s_nop 0')
    for i in range(20):
        a(f'v_sub_f32 v72, v{32+2*i}, v9')
        a(f'v_sub_f32 v73, v{33+2*i}, v9')
        a('v_cvt_pk_bf16_f32 v74, v72, v73')
        a('v_lshlrev_b32 v72, 16, v74')
        a('v_and_b32 v73, 0xffff0000, v74')
        a('v_mul_f32 v72, v72, v31')
        a('v_mul_f32 v73, v73, v31')
        a(f'v_cvt_pk_bf16_f32 v{10+i}, v72, v73')
    a('v_mul_u32_u24 v6, 5120, v2')
    a('v_lshl_add_u32 v6, v1, 4, v6')
    for kk in range(5):
        if kk < 4:
            a(f'buffer_store_dwordx4 v[{10+4*kk}:{13+4*kk}], v6, s[20:23], s3 offen offset:{1024*kk}')
        else:
            a('v_add_u32 v6, 4096, v6')
            a(f'buffer_store_dwordx4 v[{10+4*kk}:{13+4*kk}], v6, s[20:23], s3 offen')
    a.label('K0_done')
    a('s_endpgm')
    return name, dict(vgpr=88, grid=432, block=256, lds=2048)
```

```python
from fw import *
import os
ACC = 0
WF = 128
TF = 160
AW = 176
AT = 192
VW = 194
VT = 196
VL = 197
VR = 198
TMP = 128
NK = 20
class A2:
    def __init__(s, a): s.a = a
    def __call__(s, t):
        if os.environ.get('NOEPI') and t.startswith('buffer_store'): return
        if os.environ.get('K1NODMA') and ' lds' in t: return
        s.a(t)
    def label(s, n): s.a.label(n)
    @property
    def lines(s): return s.a.lines

def dma_one(a, k, j):
    st = k % 4
    if j < 2:
        a(f's_add_u32 m0, s34, {st*32768 + j*1024}')
        a('s_nop 0')
        a(f'buffer_load_dwordx4 v{VW+j}, s[12:15], s31 offen lds')
        if j == 1: a('s_add_u32 s31, s31, s37')
    else:
        a(f's_add_u32 m0, s35, {st*32768 + (j-2)*1024}')
        a('s_nop 0')
        a(f'buffer_load_dwordx4 v{VT}, s[16:19], s{32 if j == 2 else 36} offen lds')
        a(f's_add_u32 s{32 if j == 2 else 36}, s{32 if j == 2 else 36}, 1024')

def prologue(a, NA=4):
    for k in range(3):
        for j in range(2 + NA//2):
            dma_one(a, k, j)

TF2 = 200
def mainloop(a, isV, extra, NA=4):
    ND = 2 + NA//2
    q = []
    def tb(k): return TF if k % 2 == 0 else TF2
    def rdT(k, i):
        st = k % 4
        a(f'ds_read_b128 v[{tb(k)+4*i}:{tb(k)+4*i+3}], v{AT+(1 if st >= 2 else 0)} offset:{(st%2)*32768+i*1024}')
        q.append(('T', k, i))
    def rdW(k, c):
        st = k % 4
        ad = AW + (8 if st >= 2 else 0) + c
        so = (st % 2) * 32768
        a(f'ds_read_b64_tr_b16 v[{WF+4*c}:{WF+4*c+1}], v{ad} offset:{so}')
        a(f'ds_read_b64_tr_b16 v[{WF+4*c+2}:{WF+4*c+3}], v{ad} offset:{so+8192}')
        q.append(('W', k, c)); q.append(('W', k, c))
    def need(tags):
        idx = [i for i, t in enumerate(q) if t in tags]
        if idx:
            last = max(idx)
            a(f's_waitcnt lgkmcnt({min(15, len(q) - 1 - last)})')
            del q[:last+1]
    def sync(k):
        if k == 0:
            n = 2*ND + extra
        else:
            issued = min(NK-1, max(2, k+1))
            n = ND*(issued - k) + (extra if k < 3 else 0)
        a(f's_waitcnt vmcnt({n})')
        a('s_barrier')
    sync(0)
    rdT(0, 0); rdW(0, 0)
    for i in range(1, NA): rdT(0, i)
    rdW(0, 1); rdW(0, 2); rdW(0, 3)
    for k in range(NK):
        for c in range(8):
            if c == 4 and k + 1 < NK:
                sync(k+1)
            for i in range(NA):
                need([('W', k, c), ('T', k, i)])
                acc = ACC + (c*4+i)*4
                A, B = (WF+4*c, tb(k)+4*i) if not isV else (tb(k)+4*i, WF+4*c)
                C = '0' if k == 0 else f'v[{acc}:{acc+3}]'
                a(f'v_mfma_f32_16x16x32_bf16 v[{acc}:{acc+3}], v[{A}:{A+3}], v[{B}:{B+3}], {C}')
                if i == 0 and c < 4:
                    rdW(k, c+4)
                if c >= 4 and k + 1 < NK:
                    if i == 0 and c-4 < NA: rdT(k+1, c-4)
                    if i == 1: rdW(k+1, c-4)
                    if i == NA-1 and k + 3 < NK and c-4 < ND:
                        dma_one(a, k+3, c-4)
    a('s_nop 7')
    a('s_nop 1')

def tile_setup(a, idreg):
    a(f's_and_b32 s3, s{idreg}, 7')
    a(f's_lshr_b32 s28, s{idreg}, 3')
    a('s_lshr_b32 s29, s28, 3')
    a('s_and_b32 s28, s28, 7')
    a('s_lshl_b32 s29, s29, 3')
    a('s_add_u32 s29, s29, s3')
    a('s_lshr_b32 s38, s29, 4')
    a('s_cmp_eq_u32 s38, 0')
    a('s_cselect_b32 s12, s40, s42'); a('s_cselect_b32 s13, s41, s43')
    a('s_cmp_eq_u32 s38, 2')
    a('s_cselect_b32 s12, s44, s12'); a('s_cselect_b32 s13, s45, s13')
    a('s_cmp_eq_u32 s38, 3')
    a('s_cselect_b32 s12, s48, s12'); a('s_cselect_b32 s13, s49, s13')
    a('s_mov_b32 s30, 8192'); a('s_cmov_b32 s30, 3456')
    a(f's_mov_b32 s14, {640*8192}'); a(f's_cmov_b32 s14, {640*3456}')
    a('s_mov_b32 s15, 0x20000')
    a('s_and_b32 s39, s29, 15')
    a('s_lshl_b32 s46, s39, 9')
    a('s_lshl_b32 s37, s30, 5')
    a('s_mov_b32 s31, 0')
    a('s_mul_i32 s32, s28, 16*20*1024')
    a('s_add_u32 s36, s32, 20480')
    for j in range(2):
        a(f'v_mul_lo_u32 v{VW+j}, v{VR+j}, s30')
        a(f'v_add_u32 v{VW+j}, v{VW+j}, v{252+j}')
        a(f'v_add_u32 v{VW+j}, s46, v{VW+j}')

def gen_k1(a):
    a = A2(a)
    name = 'gemm1_kernel'
    kernel_begin(a, name)
    a('s_cmp_ge_u32 s2, 256')
    a('s_cbranch_scc1 K1_done')
    a(f's_load_dwordx4 s[40:43], s[0:1], {KA["Wq"]}')
    a(f's_load_dwordx2 s[44:45], s[0:1], {KA["Wv"]}')
    a(f's_load_dwordx4 s[48:51], s[0:1], {KA["w1"]}')
    a(f's_load_dwordx2 s[6:7], s[0:1], {KA["ws"]}')
    a('v_lshrrev_b32 v1, 6, v0')
    a('s_nop 0')
    a('v_readfirstlane_b32 s33, v1')
    a('s_lshl_b32 s34, s33, 11')
    a('s_add_u32 s35, s34, 16384')
    a('v_and_b32 v1, 63, v0')
    a(f'v_lshlrev_b32 v{VL}, 4, v1')
    a('v_lshrrev_b32 v2, 5, v1')
    a('s_lshl_b32 s47, s33, 2')
    for j in range(2):
        a(f'v_add_u32 v{VR+j}, s47, v2')
        if j: a(f'v_add_u32 v{VR+j}, 2, v{VR+j}')
        a(f'v_and_b32 v4, 7, v{VR+j}')
        a('v_lshlrev_b32 v4, 1, v4')
        a('v_and_b32 v5, 31, v1')
        a('v_xor_b32 v4, v4, v5')
        a(f'v_lshlrev_b32 v{252+j}, 4, v4')
    a('s_mul_i32 s47, s33, 40960')
    a(f'v_add_u32 v{VT}, s47, v{VL}')
    a('s_lshr_b32 s52, s33, 1')
    a('s_and_b32 s53, s33, 1')
    a('s_lshl_b32 s47, s52, 12')
    a('s_add_u32 s47, s47, 16384')
    a(f'v_add_u32 v{AT}, s47, v{VL}')
    a(f'v_add_u32 v{AT+1}, 0x10000, v{AT}')
    a('v_lshrrev_b32 v2, 4, v1')
    a('v_bfe_u32 v3, v1, 2, 2')
    a('v_lshl_add_u32 v4, v2, 2, v3')
    a('v_and_b32 v5, 7, v4')
    a('v_lshlrev_b32 v4, 9, v4')
    a('v_and_b32 v6, 3, v1')
    a('v_lshl_add_u32 v4, v6, 3, v4')
    a('s_lshl_b32 s47, s53, 8')
    a('v_add_u32 v4, s47, v4')
    for c in range(8):
        a(f'v_xor_b32 v6, {c}, v5')
        a(f'v_lshl_add_u32 v{AW+c}, v6, 5, v4')
        a(f'v_add_u32 v{AW+8+c}, 0x10000, v{AW+c}')
    a('s_waitcnt lgkmcnt(0)')
    srd(a, 16, 6, XNF, 128*20*1024)
    tile_setup(a, 2)
    prologue(a)
    mainloop(a, False, 0)
    a('s_cmp_eq_u32 s38, 0')
    a(f's_mov_b32 s47, 0x{KF:x}'); a(f's_cmov_b32 s47, 0x{QF:x}')
    a('s_add_u32 s20, s6, s47'); a('s_addc_u32 s21, s7, 0')
    a('s_mov_b32 s22, 0x1000000'); a('s_mov_b32 s23, 0x20000')
    a('s_lshl_b32 s47, s28, 4')
    a('s_lshl_b32 s54, s52, 2')
    a('s_add_u32 s47, s47, s54')
    a('s_lshl_b32 s47, s47, 5')
    a('s_lshl_b32 s54, s39, 1')
    a('s_add_u32 s54, s54, s53')
    a('s_add_u32 s47, s47, s54')
    a('s_lshl_b32 s47, s47, 12')
    a('s_add_u32 s56, s2, 256')
    tile_setup(a, 56)
    a('s_cmp_ge_u32 s29, 55')
    a('s_cselect_b32 s57, 0, 1')
    a('s_cbranch_scc1 K1_nonext')
    a('s_barrier')
    prologue(a)
    a.label('K1_nonext')
    for i in range(4):
        for u in range(4):
            t = TMP + 4*((i*4+u) % 4)
            a0 = ACC + ((2*u)*4+i)*4
            a1 = ACC + ((2*u+1)*4+i)*4
            a(f'v_cvt_pk_bf16_f32 v{t}, v{a0}, v{a0+1}')
            a(f'v_cvt_pk_bf16_f32 v{t+1}, v{a0+2}, v{a0+3}')
            a(f'v_cvt_pk_bf16_f32 v{t+2}, v{a1}, v{a1+1}')
            a(f'v_cvt_pk_bf16_f32 v{t+3}, v{a1+2}, v{a1+3}')
            a(f'buffer_store_dwordx4 v[{t}:{t+3}], v{VL}, s[20:23], s47 offen offset:{u*1024}')
        if i < 3:
            a('s_add_u32 s47, s47, 131072')
    a('s_cmp_eq_u32 s57, 0')
    a('s_cbranch_scc1 K1_side')
    a('s_cmp_eq_u32 s38, 2')
    a('s_cbranch_scc1 K1_V')
    mainloop(a, False, 0 if os.environ.get('NOEPI') else 16)
    srd(a, 20, 6, HF, 128*54*1024)
    srd(a, 24, 50, 0, 3456)
    a(f'v_lshrrev_b32 v251, 8, v{VL}')
    a('v_lshlrev_b32 v251, 3, v251')
    a('s_lshl_b32 s47, s53, 8')
    a('s_add_u32 s47, s47, s46')
    for c in range(8):
        a(f'buffer_load_dwordx2 v[{WF+2*c}:{WF+2*c+1}], v251, s[24:27], s47 offen offset:{32*c}')
    a('s_waitcnt vmcnt(0)')
    for c in range(8):
        for p in range(2):
            src = WF + 2*c + p
            a(f'v_lshlrev_b32 v{216+4*c+2*p}, 16, v{src}')
            a(f'v_and_b32 v{216+4*c+2*p+1}, 0xffff0000, v{src}')
    a('s_lshl_b32 s47, s28, 4')
    a('s_lshl_b32 s54, s52, 2')
    a('s_add_u32 s47, s47, s54')
    a('s_mul_i32 s47, s47, 54')
    a('s_lshl_b32 s54, s39, 3')
    a('s_lshl_b32 s55, s53, 2')
    a('s_add_u32 s54, s54, s55')
    a('s_add_u32 s47, s47, s54')
    a('s_lshl_b32 s47, s47, 10')
    for u in range(4):
        if u == 2:
            a('s_cmp_ge_u32 s54, 52')
            a('s_cbranch_scc1 K1_done')
        a('s_mov_b32 s55, s47')
        for i in range(4):
            t = TMP + 4*(i % 4)
            for half in range(2):
                c = 2*u + half
                ac = ACC + (c*4+i)*4
                for p in range(2):
                    x0, x1 = 248, 249
                    a(f'v_cvt_pk_bf16_f32 v250, v{ac+2*p}, v{ac+2*p+1}')
                    a(f'v_lshlrev_b32 v{x0}, 16, v250')
                    a(f'v_and_b32 v{x1}, 0xffff0000, v250')
                    a(f'v_add_f32 v{x0}, v{x0}, v{216+4*c+2*p}')
                    a(f'v_add_f32 v{x1}, v{x1}, v{216+4*c+2*p+1}')
                    a(f'v_cvt_pk_bf16_f32 v250, v{x0}, v{x1}')
                    a(f'v_lshlrev_b32 v{x0}, 16, v250')
                    a(f'v_and_b32 v{x1}, 0xffff0000, v250')
                    a(f'v_max_f32 v{x0}, 0, v{x0}')
                    a(f'v_max_f32 v{x1}, 0, v{x1}')
                    a(f'v_mul_f32 v{x0}, v{x0}, v{x0}')
                    a(f'v_mul_f32 v{x1}, v{x1}, v{x1}')
                    a(f'v_cvt_pk_bf16_f32 v{t+2*half+p}, v{x0}, v{x1}')
            a(f'buffer_store_dwordx4 v[{t}:{t+3}], v{VL}, s[20:23], s55 offen offset:{u*1024}')
            if i < 3:
                a(f's_add_u32 s55, s55, {54*1024}')
    a('s_branch K1_done')
    a.label('K1_V')
    mainloop(a, True, 0 if os.environ.get('NOEPI') else 16)
    srd(a, 20, 6, VF, 0x1000000)
    a('s_lshl_b32 s47, s28, 3')
    a('s_lshl_b32 s54, s52, 1')
    a('s_add_u32 s47, s47, s54')
    a('s_lshl_b32 s47, s47, 5')
    a('s_lshl_b32 s54, s39, 1')
    a('s_add_u32 s54, s54, s53')
    a('s_add_u32 s47, s47, s54')
    a('s_lshl_b32 s47, s47, 13')
    for sp in range(2):
        for c in range(8):
            t = TMP + 4*(c % 4)
            a0 = ACC + (c*4+2*sp)*4
            a1 = ACC + (c*4+2*sp+1)*4
            a(f'v_cvt_pk_bf16_f32 v{t}, v{a0}, v{a0+1}')
            a(f'v_cvt_pk_bf16_f32 v{t+1}, v{a0+2}, v{a0+3}')
            a(f'v_cvt_pk_bf16_f32 v{t+2}, v{a1}, v{a1+1}')
            a(f'v_cvt_pk_bf16_f32 v{t+3}, v{a1+2}, v{a1+3}')
            a(f'buffer_store_dwordx4 v[{t}:{t+3}], v{VL}, s[20:23], s47 offen offset:{(c%4)*1024}')
            if c == 3:
                a('s_add_u32 s47, s47, 4096')
        if sp == 0:
            a(f's_add_u32 s47, s47, {32*8192 - 4096}')
    a('s_branch K1_done')
    a.label('K1_side')
    a('s_cmp_lt_u32 s2, 192')
    a('s_cbranch_scc1 K1_done')
    a(f's_load_dwordx2 s[60:61], s[0:1], {KA["Wo"]}')
    a(f's_load_dwordx2 s[62:63], s[0:1], {KA["w2"]}')
    srd(a, 20, 6, F0, FILLSZ)
    a('s_sub_u32 s3, s2, 192')
    a('s_lshl_b32 s58, s3, 3')
    a('s_add_u32 s58, s58, s33')
    a('s_mul_i32 s3, s58, 55296')
    for r in range(4):
        a(f'v_mov_b32 v{r}, -1')
    for j in range(54):
        a(f'buffer_store_dwordx4 v[0:3], v{VL}, s[20:23], s3 offen')
        if j < 53: a('s_add_u32 s3, s3, 1024')
    a('s_waitcnt lgkmcnt(0)')
    a('s_barrier')
    a(f'v_lshrrev_b32 v1, 4, v{VL}')
    a('s_mov_b32 s37, 0x1999999a')
    for j in range(5):
        a(f'v_add_u32 v2, {64*j}, v1')
        a('v_mul_hi_u32 v3, v2, s37')
        a('v_mul_u32_u24 v4, 10, v3')
        a('v_sub_u32 v4, v2, v4')
        a('v_mul_u32_u24 v3, 1280, v3')
        a(f'v_lshl_add_u32 v{8+j}, v4, 4, v3')
    a('s_mul_i32 s34, s33, 5120')
    a('v_lshrrev_b32 v2, 2, v1')
    a('v_mul_u32_u24 v2, 160, v2')
    a('v_and_b32 v3, 3, v1')
    a('v_lshl_add_u32 v2, v3, 3, v2')
    a('v_add_u32 v13, s34, v2')
    a(f'v_add_u32 v14, 4096, v{VL}')
    srd(a, 24, 6, WOF, 0xA00000)
    a.label('K1_rl')
    a('s_and_b32 s3, s58, 7')
    a('s_lshr_b32 s47, s58, 3')
    a('s_cmp_lt_u32 s47, 128')
    a('s_cselect_b32 s8, s60, s62'); a('s_cselect_b32 s9, s61, s63')
    a(f's_mov_b32 s10, {1728*1280}'); a(f's_cmov_b32 s10, {4096*1280}')
    a('s_mov_b32 s11, 0x20000')
    a('s_cselect_b32 s54, 0, 128')
    a('s_mov_b32 s55, 54'); a('s_cmov_b32 s55, 128')
    a(f's_mov_b32 s56, {W2F - WOF}'); a('s_cmov_b32 s56, 0')
    a('s_sub_u32 s54, s47, s54')
    a('s_mul_i32 s55, s55, s3')
    a('s_add_u32 s55, s55, s54')
    a('s_mul_i32 s55, s55, 5120')
    a('s_add_u32 s55, s55, s56')
    a('s_mul_i32 s54, s54, 40960')
    a('s_mul_i32 s3, s3, 160')
    a('s_add_u32 s54, s54, s3')
    for j in range(5):
        a(f's_add_u32 m0, s34, {j*1024}')
        a('s_nop 0')
        a(f'buffer_load_dwordx4 v{8+j}, s[8:11], s54 offen lds')
    a('s_waitcnt vmcnt(0)')
    for c in range(5):
        a(f'ds_read_b64_tr_b16 v[{16+4*c}:{17+4*c}], v13 offset:{32*c}')
        a(f'ds_read_b64_tr_b16 v[{18+4*c}:{19+4*c}], v13 offset:{32*c + 2560}')
    a('s_waitcnt lgkmcnt(0)')
    for c in range(5):
        a(f'buffer_store_dwordx4 v[{16+4*c}:{19+4*c}], v{VL if c < 4 else 14}, s[24:27], s55 offen offset:{(c%4)*1024}')
    a('s_add_u32 s58, s58, 512')
    a('s_cmp_lt_u32 s58, 1456')
    a('s_cbranch_scc1 K1_rl')
    a.label('K1_done')
    a('s_endpgm')
    return name, dict(vgpr=256, grid=256, block=512, lds=131072)
```

```python
from fw import *
import os
import k1
from k1 import ACC, WF, TF, AW, AT, VW, VT, VL, VR, TMP, mainloop, prologue
from chain16 import chain_body, register, CEXP, maxops

KVN = 4
ASLP = int(os.environ.get('ASLP', '12'))
def flag_add(a, sidx):
    l = a.newlabel('FA')
    a('s_waitcnt vmcnt(0)')
    a('s_barrier')
    a('s_cmp_lg_u32 s33, 0')
    a(f's_cbranch_scc1 {l}')
    a('s_mov_b64 exec, 1')
    a(f's_lshl_b32 s3, s{sidx}, 7')
    a('v_mov_b32 v254, 0')
    a('v_mov_b32 v255, 1')
    a('buffer_atomic_add v255, v254, s[76:79], s3 offen')
    a('s_mov_b64 exec, -1')
    a.label(l)

def flag_wait(a, sidx, val, done, slp=16, wg=True):
    l = a.newlabel('FW'); l2 = a.newlabel('FK')
    if wg:
        a('s_cmp_lg_u32 s33, 0')
        a(f's_cbranch_scc1 {l2}')
    a(f's_lshl_b32 s3, s{sidx}, 7')
    a('v_mov_b32 v254, 0')
    a.label(l)
    a('buffer_load_dword v255, v254, s[76:79], s3 offen sc1')
    a('s_waitcnt vmcnt(0)')
    a('v_readfirstlane_b32 s75, v255')
    a(f's_cmp_ge_u32 s75, {val}')
    a(f's_cbranch_scc1 {l2}')
    a(f's_sleep {slp}')
    a('s_sub_u32 s44, s44, 1')
    a(f's_cbranch_scc0 {l}')
    a(f's_branch {done}')
    a.label(l2)
    if wg:
        a('s_barrier')

def kvwait(a, tag):
    l = f'C_kvok{tag}'
    if tag == 'i':
        srd(a, 76, 58, CNT, CNTSZ)
    else:
        a('s_and_b32 s3, s43, 3')
        a('s_cmp_lg_u32 s3, 0')
        a(f's_cbranch_scc1 {l}')
    a('s_lshl_b32 s74, s40, 4')
    a('s_lshr_b32 s3, s43, 2')
    a('s_add_u32 s74, s74, s3')
    flag_wait(a, 74, 4, 'M_done', 2, False)
    a.label(l)

def tile_setup2(a):
    a('s_lshr_b32 s38, s29, 4')
    a('s_cmp_eq_u32 s38, 0')
    a('s_cselect_b32 s12, s40, s42'); a('s_cselect_b32 s13, s41, s43')
    a('s_cmp_eq_u32 s38, 2')
    a('s_cselect_b32 s12, s80, s12'); a('s_cselect_b32 s13, s81, s13')
    a('s_cmp_eq_u32 s38, 3')
    a('s_cselect_b32 s12, s48, s12'); a('s_cselect_b32 s13, s49, s13')
    a('s_mov_b32 s30, 8192'); a('s_cmov_b32 s30, 3456')
    a(f's_mov_b32 s14, {640*8192}'); a(f's_cmov_b32 s14, {640*3456}')
    a('s_mov_b32 s15, 0x20000')
    a('s_and_b32 s39, s29, 15')
    a('s_lshl_b32 s46, s39, 9')
    a('s_lshl_b32 s37, s30, 5')
    a('s_mov_b32 s31, 0')
    a('s_mul_i32 s32, s28, 16*20*1024')
    a('s_add_u32 s36, s32, 20480')
    for j in range(2):
        a(f'v_mul_lo_u32 v{VW+j}, v{VR+j}, s30')
        a(f'v_add_u32 v{VW+j}, v{VW+j}, v{252+j}')
        a(f'v_add_u32 v{VW+j}, s46, v{VW+j}')

def worker(a, done):
    a('s_barrier')
    a('s_mov_b32 s70, s40')
    a('s_sub_u32 s71, s41, 16')
    a(f's_load_dwordx4 s[40:43], s[0:1], {KA["Wq"]}')
    a(f's_load_dwordx2 s[80:81], s[0:1], {KA["Wv"]}')
    a(f's_load_dwordx4 s[48:51], s[0:1], {KA["w1"]}')
    a(f's_load_dwordx2 s[6:7], s[0:1], {KA["ws"]}')
    a(f's_load_dwordx2 s[60:61], s[0:1], {KA["Wo"]}')
    a(f's_load_dwordx4 s[64:67], s[0:1], {KA["w2"]}')
    a(f's_load_dwordx2 s[68:69], s[0:1], {KA["x"]}')
    a(f's_load_dwordx2 s[82:83], s[0:1], {KA["out"]}')
    a('s_lshl_b32 s34, s33, 11')
    a('s_add_u32 s35, s34, 16384')
    a('v_mov_b32 v1, v0')
    a(f'v_lshlrev_b32 v{VL}, 4, v1')
    a('v_lshrrev_b32 v2, 5, v1')
    a('s_lshl_b32 s47, s33, 2')
    for j in range(2):
        a(f'v_add_u32 v{VR+j}, s47, v2')
        if j: a(f'v_add_u32 v{VR+j}, 2, v{VR+j}')
        a(f'v_and_b32 v4, 7, v{VR+j}')
        a('v_lshlrev_b32 v4, 1, v4')
        a('v_and_b32 v5, 31, v1')
        a('v_xor_b32 v4, v4, v5')
        a(f'v_lshlrev_b32 v{252+j}, 4, v4')
    a('s_mul_i32 s47, s33, 40960')
    a(f'v_add_u32 v{VT}, s47, v{VL}')
    a('s_lshr_b32 s52, s33, 1')
    a('s_and_b32 s53, s33, 1')
    a('s_lshl_b32 s47, s52, 12')
    a('s_add_u32 s47, s47, 16384')
    a(f'v_add_u32 v{AT}, s47, v{VL}')
    a(f'v_add_u32 v{AT+1}, 0x10000, v{AT}')
    a('v_lshrrev_b32 v2, 4, v1')
    a('v_bfe_u32 v3, v1, 2, 2')
    a('v_lshl_add_u32 v4, v2, 2, v3')
    a('v_and_b32 v5, 7, v4')
    a('v_lshlrev_b32 v4, 9, v4')
    a('v_and_b32 v6, 3, v1')
    a('v_lshl_add_u32 v4, v6, 3, v4')
    a('s_lshl_b32 s47, s53, 8')
    a('v_add_u32 v4, s47, v4')
    for c in range(8):
        a(f'v_xor_b32 v6, {c}, v5')
        a(f'v_lshl_add_u32 v{AW+c}, v6, 5, v4')
        a(f'v_add_u32 v{AW+8+c}, 0x10000, v{AW+c}')
    a('s_waitcnt lgkmcnt(0)')
    srd(a, 16, 6, XNF, 128*20*1024)
    srd(a, 76, 6, CNT, CNTSZ)
    a('s_mov_b32 s72, 0')
    a.label('W_task')
    a('s_cmp_ge_u32 s72, 4')
    a('s_cbranch_scc1 W_t23')
    a('s_lshr_b32 s28, s71, 2')
    a('s_lshl_b32 s3, s72, 2')
    a('s_add_u32 s28, s28, s3')
    a('s_bfe_u32 s3, s71, 0x10001')
    a('s_lshl_b32 s29, s3, 4')
    a('s_add_u32 s29, s29, 16')
    a('s_lshl_b32 s3, s70, 1'); a('s_add_u32 s29, s29, s3')
    a('s_and_b32 s3, s71, 1'); a('s_add_u32 s29, s29, s3')
    a('s_lshl_b32 s73, s70, 4'); a('s_add_u32 s73, s73, s28')
    tile_setup2(a)
    a('s_lshr_b32 s32, s32, 1')
    a('s_lshl_b32 s35, s33, 10'); a('s_add_u32 s35, s35, 16384')
    a('s_mul_i32 s47, s33, 20480')
    a(f'v_add_u32 v{VT}, s47, v{VL}')
    a('s_lshl_b32 s47, s52, 11'); a('s_add_u32 s47, s47, 16384')
    a(f'v_add_u32 v{AT}, s47, v{VL}')
    a(f'v_add_u32 v{AT+1}, 0x10000, v{AT}')
    prologue(a, 2)
    a('s_cmp_eq_u32 s38, 2')
    a('s_cbranch_scc1 W_V')
    mainloop(a, False, 0, 2)
    srd(a, 20, 6, KF, 0x1000000)
    a('s_lshl_b32 s47, s28, 3')
    a('s_lshl_b32 s54, s52, 1')
    a('s_add_u32 s47, s47, s54')
    a('s_lshl_b32 s47, s47, 5')
    a('s_lshl_b32 s54, s39, 1')
    a('s_add_u32 s54, s54, s53')
    a('s_add_u32 s47, s47, s54')
    a('s_lshl_b32 s47, s47, 12')
    for i in range(2):
        for u in range(4):
            t = TMP + 4*((i*4+u) % 4)
            a0 = ACC + ((2*u)*4+i)*4
            a1 = ACC + ((2*u+1)*4+i)*4
            a(f'v_cvt_pk_bf16_f32 v{t}, v{a0}, v{a0+1}')
            a(f'v_cvt_pk_bf16_f32 v{t+1}, v{a0+2}, v{a0+3}')
            a(f'v_cvt_pk_bf16_f32 v{t+2}, v{a1}, v{a1+1}')
            a(f'v_cvt_pk_bf16_f32 v{t+3}, v{a1+2}, v{a1+3}')
            a(f'buffer_store_dwordx4 v[{t}:{t+3}], v{VL}, s[20:23], s47 offen offset:{u*1024} sc1')
        if i < 1:
            a('s_add_u32 s47, s47, 131072')
    a('s_branch W_next')
    a.label('W_t23')
    a('s_lshl_b32 s35, s33, 11'); a('s_add_u32 s35, s35, 16384')
    a('s_mul_i32 s47, s33, 40960')
    a(f'v_add_u32 v{VT}, s47, v{VL}')
    a('s_lshl_b32 s47, s52, 12'); a('s_add_u32 s47, s47, 16384')
    a(f'v_add_u32 v{AT}, s47, v{VL}')
    a(f'v_add_u32 v{AT+1}, 0x10000, v{AT}')
    a('s_cmp_eq_u32 s72, 5')
    a('s_cbranch_scc1 W_t3')
    a('s_lshr_b32 s28, s71, 1')
    a('s_lshl_b32 s29, s70, 1')
    a('s_and_b32 s3, s71, 1'); a('s_add_u32 s29, s29, s3')
    a('s_lshl_b32 s73, s70, 3'); a('s_add_u32 s73, s73, s28'); a(f's_add_u32 s73, s73, {CNT_Q}')
    a('s_branch W_go')
    a.label('W_t3')
    a('s_lshl_b32 s3, s70, 4'); a('s_add_u32 s58, s3, s71')
    a('s_cmp_ge_u32 s58, 56')
    a('s_cbranch_scc1 W_side')
    a('s_and_b32 s28, s58, 7')
    a('s_lshr_b32 s29, s58, 3'); a('s_add_u32 s29, s29, 48')
    a(f's_add_u32 s73, s28, {CNT_H}')
    a.label('W_go')
    tile_setup2(a)
    prologue(a)
    mainloop(a, False, 0)
    a('s_cmp_eq_u32 s38, 3')
    a('s_cbranch_scc1 W_F')
    srd(a, 20, 6, QF, 0x1000000)
    a('s_lshl_b32 s47, s28, 4')
    a('s_lshl_b32 s54, s52, 2')
    a('s_add_u32 s47, s47, s54')
    a('s_lshl_b32 s47, s47, 5')
    a('s_lshl_b32 s54, s39, 1')
    a('s_add_u32 s54, s54, s53')
    a('s_add_u32 s47, s47, s54')
    a('s_lshl_b32 s47, s47, 12')
    for i in range(4):
        for u in range(4):
            t = TMP + 4*((i*4+u) % 4)
            a0 = ACC + ((2*u)*4+i)*4
            a1 = ACC + ((2*u+1)*4+i)*4
            a(f'v_cvt_pk_bf16_f32 v{t}, v{a0}, v{a0+1}')
            a(f'v_cvt_pk_bf16_f32 v{t+1}, v{a0+2}, v{a0+3}')
            a(f'v_cvt_pk_bf16_f32 v{t+2}, v{a1}, v{a1+1}')
            a(f'v_cvt_pk_bf16_f32 v{t+3}, v{a1+2}, v{a1+3}')
            a(f'buffer_store_dwordx4 v[{t}:{t+3}], v{VL}, s[20:23], s47 offen offset:{u*1024} sc1')
        if i < 3:
            a('s_add_u32 s47, s47, 131072')
    a('s_branch W_next')
    a.label('W_F')
    srd(a, 20, 6, HF, 128*54*1024)
    srd(a, 24, 50, 0, 3456)
    a(f'v_lshrrev_b32 v251, 8, v{VL}')
    a('v_lshlrev_b32 v251, 3, v251')
    a('s_lshl_b32 s47, s53, 8')
    a('s_add_u32 s47, s47, s46')
    for c in range(8):
        a(f'buffer_load_dwordx2 v[{WF+2*c}:{WF+2*c+1}], v251, s[24:27], s47 offen offset:{32*c}')
    a('s_waitcnt vmcnt(0)')
    for c in range(8):
        for p in range(2):
            src = WF + 2*c + p
            a(f'v_lshlrev_b32 v{216+4*c+2*p}, 16, v{src}')
            a(f'v_and_b32 v{216+4*c+2*p+1}, 0xffff0000, v{src}')
    a('s_lshl_b32 s47, s28, 4')
    a('s_lshl_b32 s54, s52, 2')
    a('s_add_u32 s47, s47, s54')
    a('s_mul_i32 s47, s47, 54')
    a('s_lshl_b32 s54, s39, 3')
    a('s_lshl_b32 s55, s53, 2')
    a('s_add_u32 s54, s54, s55')
    a('s_add_u32 s47, s47, s54')
    a('s_lshl_b32 s47, s47, 10')
    for u in range(4):
        if u == 2:
            a('s_cmp_ge_u32 s54, 52')
            a('s_cbranch_scc1 W_next')
        a('s_mov_b32 s55, s47')
        for i in range(4):
            t = TMP + 4*(i % 4)
            for half in range(2):
                c = 2*u + half
                ac = ACC + (c*4+i)*4
                for p in range(2):
                    x0, x1 = 248, 249
                    a(f'v_cvt_pk_bf16_f32 v250, v{ac+2*p}, v{ac+2*p+1}')
                    a(f'v_lshlrev_b32 v{x0}, 16, v250')
                    a(f'v_and_b32 v{x1}, 0xffff0000, v250')
                    a(f'v_add_f32 v{x0}, v{x0}, v{216+4*c+2*p}')
                    a(f'v_add_f32 v{x1}, v{x1}, v{216+4*c+2*p+1}')
                    a(f'v_cvt_pk_bf16_f32 v250, v{x0}, v{x1}')
                    a(f'v_lshlrev_b32 v{x0}, 16, v250')
                    a(f'v_and_b32 v{x1}, 0xffff0000, v250')
                    a(f'v_max_f32 v{x0}, 0, v{x0}')
                    a(f'v_max_f32 v{x1}, 0, v{x1}')
                    a(f'v_mul_f32 v{x0}, v{x0}, v{x0}')
                    a(f'v_mul_f32 v{x1}, v{x1}, v{x1}')
                    a(f'v_cvt_pk_bf16_f32 v{t+2*half+p}, v{x0}, v{x1}')
            a(f'buffer_store_dwordx4 v[{t}:{t+3}], v{VL}, s[20:23], s55 offen offset:{u*1024} sc1')
            if i < 3:
                a(f's_add_u32 s55, s55, {54*1024}')
    a('s_branch W_next')
    a.label('W_V')
    mainloop(a, True, 0, 2)
    srd(a, 20, 6, VF, 0x1000000)
    a('s_lshl_b32 s47, s28, 2')
    a('s_add_u32 s47, s47, s52')
    a('s_lshl_b32 s47, s47, 5')
    a('s_lshl_b32 s54, s39, 1')
    a('s_add_u32 s54, s54, s53')
    a('s_add_u32 s47, s47, s54')
    a('s_lshl_b32 s47, s47, 13')
    for c in range(8):
        t = TMP + 4*(c % 4)
        a0 = ACC + (c*4)*4
        a1 = ACC + (c*4+1)*4
        a(f'v_cvt_pk_bf16_f32 v{t}, v{a0}, v{a0+1}')
        a(f'v_cvt_pk_bf16_f32 v{t+1}, v{a0+2}, v{a0+3}')
        a(f'v_cvt_pk_bf16_f32 v{t+2}, v{a1}, v{a1+1}')
        a(f'v_cvt_pk_bf16_f32 v{t+3}, v{a1+2}, v{a1+3}')
        a(f'buffer_store_dwordx4 v[{t}:{t+3}], v{VL}, s[20:23], s47 offen offset:{(c%4)*1024} sc1')
        if c == 3:
            a('s_add_u32 s47, s47, 4096')
    a.label('W_next')
    flag_add(a, 73)
    a('s_add_u32 s72, s72, 1')
    a('s_cmp_lt_u32 s72, 6')
    a('s_cbranch_scc1 W_task')
    a('s_branch W_attn')
    a.label('W_side')
    a('s_sub_u32 s58, s58, 56')
    a('s_lshl_b32 s58, s58, 3')
    a('s_add_u32 s58, s58, s33')
    a(f'v_lshrrev_b32 v1, 4, v{VL}')
    a('s_mov_b32 s37, 0x1999999a')
    for j in range(5):
        a(f'v_add_u32 v2, {64*j}, v1')
        a('v_mul_hi_u32 v3, v2, s37')
        a('v_mul_u32_u24 v4, 10, v3')
        a('v_sub_u32 v4, v2, v4')
        a('v_mul_u32_u24 v3, 1280, v3')
        a(f'v_lshl_add_u32 v{8+j}, v4, 4, v3')
    a('s_mul_i32 s34, s33, 5120')
    a('v_lshrrev_b32 v2, 2, v1')
    a('v_mul_u32_u24 v2, 160, v2')
    a('v_and_b32 v3, 3, v1')
    a('v_lshl_add_u32 v2, v3, 3, v2')
    a('v_add_u32 v13, s34, v2')
    a(f'v_add_u32 v14, 4096, v{VL}')
    srd(a, 24, 6, WOF, 0xA00000)
    a.label('W_rl')
    a('s_and_b32 s3, s58, 7')
    a('s_lshr_b32 s47, s58, 3')
    a('s_cmp_lt_u32 s47, 128')
    a('s_cselect_b32 s8, s60, s64'); a('s_cselect_b32 s9, s61, s65')
    a(f's_mov_b32 s10, {1728*1280}'); a(f's_cmov_b32 s10, {4096*1280}')
    a('s_mov_b32 s11, 0x20000')
    a('s_cselect_b32 s54, 0, 128')
    a('s_mov_b32 s55, 54'); a('s_cmov_b32 s55, 128')
    a(f's_mov_b32 s56, {W2F - WOF}'); a('s_cmov_b32 s56, 0')
    a('s_sub_u32 s54, s47, s54')
    a('s_mul_i32 s55, s55, s3')
    a('s_add_u32 s55, s55, s54')
    a('s_mul_i32 s55, s55, 5120')
    a('s_add_u32 s55, s55, s56')
    a('s_mul_i32 s54, s54, 40960')
    a('s_mul_i32 s3, s3, 160')
    a('s_add_u32 s54, s54, s3')
    for j in range(5):
        a(f's_add_u32 m0, s34, {j*1024}')
        a('s_nop 0')
        a(f'buffer_load_dwordx4 v{8+j}, s[8:11], s54 offen lds')
    a('s_waitcnt vmcnt(0)')
    for c in range(5):
        a(f'ds_read_b64_tr_b16 v[{16+4*c}:{17+4*c}], v13 offset:{32*c}')
        a(f'ds_read_b64_tr_b16 v[{18+4*c}:{19+4*c}], v13 offset:{32*c + 2560}')
    a('s_waitcnt lgkmcnt(0)')
    for c in range(5):
        a(f'buffer_store_dwordx4 v[{16+4*c}:{19+4*c}], v{VL if c < 4 else 14}, s[24:27], s55 offen offset:{(c%4)*1024} sc1')
    a('s_add_u32 s58, s58, 576')
    a('s_cmp_lt_u32 s58, 1456')
    a('s_cbranch_scc1 W_rl')
    a(f's_mov_b32 s73, {CNT_RL}')
    flag_add(a, 73)
    a.label('W_attn')
    post_part(a, done)

def post_part(a, done):
    VL = 250
    a(f'v_mov_b32 v{VL}, v{k1.VL}')
    LN, V20, V4K, VMO, BI, CB = 251, 252, 253, 249, 240, 244
    a(f'v_lshrrev_b32 v{LN}, 4, v{VL}')
    a(f'v_add_u32 v{V4K}, 4096, v{VL}')
    a(f'v_and_b32 v{VMO}, 31, v{LN}')
    a(f'v_lshlrev_b32 v{VMO}, 4, v{VMO}')
    a('v_mov_b32 v0, 0xf149f2ca')
    a(f'v_cmp_gt_u32 vcc, 32, v{LN}')
    a('s_nop 1')
    for r in range(4):
        a(f'v_cndmask_b32 v{BI+r}, 0, v0, vcc')
    a(f'v_lshrrev_b32 v1, 4, v{LN}')
    a('v_lshlrev_b32 v1, 2, v1')
    a(f'v_and_b32 v2, 15, v{LN}')
    for r in range(4):
        a(f'v_add_u32 v{CB+r}, {r}, v1')
        a(f'v_cmp_gt_u32 vcc, v{CB+r}, v2')
        a('s_nop 1')
        a(f'v_cndmask_b32 v{CB+r}, 0, v0, vcc')
    a(f's_mov_b32 s74, {CNT_RL}')
    flag_wait(a, 74, 72, done)
    a('s_mov_b32 s72, s71')
    a.label('P_loop')
    AG, AS, FR = 200, 160, 0
    NB = 4
    def part(tag, acc, tok_srd, w_srd, tstride):
        a(f'v_add_u32 v{V20}, {tstride}, v{VL}')
        def ld(b):
            base = FR + 28*b
            for c in range(5):
                a(f'buffer_load_dwordx4 v[{base+8+4*c}:{base+11+4*c}], v{VL if c < 4 else V4K}, s[{w_srd}:{w_srd+3}], s41 offen offset:{(c%4)*1024} sc1')
            for i in range(2):
                a(f'buffer_load_dwordx4 v[{base+4*i}:{base+4*i+3}], v{VL if i == 0 else V20}, s[{tok_srd}:{tok_srd+3}], s40 offen sc1')
            a('s_add_u32 s41, s41, 5120')
            a('s_add_u32 s40, s40, 1024')
        for b in range(NB-1): ld(b)
        for r in range(40):
            a(f'v_mov_b32 v{acc+r}, 0')
        a('s_mov_b32 s45, 0')
        a.label(f'P_fl{tag}')
        for b in range(NB):
            ld((b+NB-1) % NB)
            a(f's_waitcnt vmcnt({7*(NB-1)})')
            base = FR + 28*b
            for c in range(5):
                for i in range(2):
                    ac = acc + (i*5+c)*4
                    a(f'v_mfma_f32_16x16x32_bf16 v[{ac}:{ac+3}], v[{base+8+4*c}:{base+11+4*c}], v[{base+4*i}:{base+4*i+3}], v[{ac}:{ac+3}]')
            a('s_add_u32 s45, s45, 1')
            a('s_cmp_ge_u32 s45, s42')
            a(f's_cbranch_scc1 P_fe{tag}')
        a(f's_branch P_fl{tag}')
        a.label(f'P_fe{tag}')
        a('s_waitcnt vmcnt(0)')
    srd(a, 12, 6, W2F, 8*54*5120)
    srd(a, 20, 6, HF, 128*54*1024)
    a('s_lshr_b32 s74, s72, 3'); a(f's_add_u32 s74, s74, {CNT_H}')
    flag_wait(a, 74, 7, done)
    a('s_mul_i32 s3, s33, 6')
    a('s_min_u32 s43, s33, 6')
    a('s_add_u32 s3, s3, s43')
    a('s_mul_i32 s40, s72, 2*54*1024')
    a('s_lshl_b32 s43, s3, 10')
    a('s_add_u32 s40, s40, s43')
    a('s_mul_i32 s41, s70, 54')
    a('s_add_u32 s41, s41, s3')
    a('s_mul_i32 s41, s41, 5120')
    a('s_cmp_lt_u32 s33, 6')
    a('s_cselect_b32 s42, 7, 6')
    part('G', AG, 20, 12, 54*1024)
    QQ, KK, QM, VX, VM, S, P, O = 0, 16, 48, 64, 96, 112, 124, 132
    srd(a, 8, 6, QF, 0x1000000)
    srd(a, 12, 6, KF, 0x1000000)
    srd(a, 16, 6, VF, 0x1000000)
    srd(a, 20, 6, CQK, 64*32*4096)
    srd(a, 24, 6, CV, 64*32*2048)
    srd(a, 28, 6, OF, 0x1000000)
    a(f's_mov_b32 s41, 0x{CEXP:x}')
    a(f'v_add_u32 v{V20}, 0x20000, v{VL}')
    for r in range(16):
        a(f'v_mov_b32 v{VM+r}, 0')
    a('s_lshl_b32 s74, s70, 4'); a('s_lshr_b32 s3, s72, 2'); a('s_add_u32 s74, s74, s3')
    flag_wait(a, 74, KVN, done)
    a('s_lshl_b32 s74, s70, 3'); a('s_lshr_b32 s3, s72, 3'); a('s_add_u32 s74, s74, s3')
    a(f's_add_u32 s74, s74, {CNT_Q}')
    flag_wait(a, 74, 2, done)
    a('s_lshl_b32 s35, s70, 2'); a('s_and_b32 s3, s33, 3'); a('s_add_u32 s35, s35, s3')
    a('s_lshl_b32 s3, s72, 5'); a('s_add_u32 s3, s3, s35')
    a('s_lshl_b32 s36, s72, 18')
    a('s_lshl_b32 s37, s35, 12')
    a('s_add_u32 s36, s36, s37')
    a('s_lshr_b32 s52, s33, 2')
    a('s_lshl_b32 s37, s52, 17')
    a('s_add_u32 s37, s37, s36')
    a('s_lshl_b32 s38, s3, 13')
    a('s_lshl_b32 s39, s3, 12')
    a('s_lshl_b32 s40, s3, 11')
    for u in range(4):
        a(f'buffer_load_dwordx4 v[{QQ+4*u}:{QQ+4*u+3}], v{VL}, s[8:11], s37 offen offset:{u*1024} sc1')
    for t in range(2):
        for u in range(4):
            r = KK + (t*4+u)*4
            a(f'buffer_load_dwordx4 v[{r}:{r+3}], v{VL if t == 0 else V20}, s[12:15], s36 offen offset:{u*1024} sc1')
    for ct in range(8):
        a(f'buffer_load_dwordx4 v[{VX+4*ct}:{VX+4*ct+3}], v{VL if ct < 4 else V4K}, s[16:19], s38 offen offset:{(ct%4)*1024} sc1')
    m_, t_, l_ = 164, 165, 166
    a('s_cmp_lg_u32 s33, 0')
    a('s_cbranch_scc1 P_lp_done')
    a('s_mov_b64 exec, 1')
    a.label('P_lp')
    a(f'buffer_load_dword v{m_}, v{VL}, s[24:27], s40 offen sc1')
    a('s_waitcnt vmcnt(0)')
    a(f'v_cmp_eq_u32 vcc, -1, v{m_}')
    a('s_cbranch_vccz P_lp_ok')
    a(f's_sleep {ASLP}')
    a('s_sub_u32 s44, s44, 1')
    a('s_cbranch_scc0 P_lp')
    a(f's_branch {done}')
    a.label('P_lp_ok')
    a('s_mov_b64 exec, -1')
    a.label('P_lp_done')
    a('s_barrier')
    a.label('P_at_poll')
    for u in range(4):
        a(f'buffer_load_dwordx4 v[{QM+4*u}:{QM+4*u+3}], v{VL}, s[20:23], s39 offen offset:{u*1024} sc1')
    a('s_mov_b32 exec_lo, 0')
    for u in range(4):
        a(f'buffer_load_dwordx4 v[{VM+4*u}:{VM+4*u+3}], v{VMO}, s[24:27], s40 offen offset:{u*512} sc1')
    a('s_mov_b32 exec_lo, -1')
    a('s_waitcnt vmcnt(0)')
    for o in maxops(list(range(QM, QM+16)) + list(range(VM, VM+16)), m_): a(o)
    a('s_cbranch_vccz P_at_ok')
    a('s_sleep 2')
    a('s_sub_u32 s44, s44, 1')
    a('s_cbranch_scc0 P_at_poll')
    a(f's_branch {done}')
    a.label('P_at_ok')
    a('s_cmp_eq_u32 s52, 1')
    a('s_cbranch_scc1 P_q1')
    for qt in range(2):
        if qt == 1: a.label('P_q1')
        tiles = [0, 2] if qt == 0 else [0, 1, 2]
        for u in range(4):
            for t3 in tiles:
                A = (KK + (t3*4+u)*4) if t3 < 2 else QM + 4*u
                acc = S + 4*t3
                if u == 0:
                    C = f'v[{BI}:{BI+3}]' if t3 == 2 else (f'v[{CB}:{CB+3}]' if t3 == qt else '0')
                else:
                    C = f'v[{acc}:{acc+3}]'
                a(f'v_mfma_f32_16x16x32_bf16 v[{acc}:{acc+3}], v[{A}:{A+3}], v[{QQ+4*u}:{QQ+4*u+3}], {C}')
        a('s_nop 7')
        regs = [S+4*t3+r for t3 in tiles for r in range(4)]
        a(f'v_max3_f32 v{m_}, v{regs[0]}, v{regs[1]}, v{regs[2]}')
        i = 3
        while i + 1 < len(regs):
            a(f'v_max3_f32 v{m_}, v{m_}, v{regs[i]}, v{regs[i+1]}'); i += 2
        a(f'v_max_f32 v{m_}, v{m_}, v{regs[i]}')
        for sw in ('32', '16'):
            a(f'v_mov_b32 v{t_}, v{m_}')
            a('s_nop 1')
            a(f'v_permlane{sw}_swap_b32 v{m_}, v{t_}')
            a(f'v_max_f32 v{m_}, v{m_}, v{t_}')
        a(f'v_mul_f32 v{m_}, s41, v{m_}')
        for r in regs:
            a(f'v_fma_f32 v{r}, v{r}, s41, -v{m_}')
        for r in regs:
            a(f'v_exp_f32 v{r}, v{r}')
        for t3 in range(3):
            if t3 in tiles:
                a(f'v_cvt_pk_bf16_f32 v{P+2*t3}, v{S+4*t3}, v{S+4*t3+1}')
                a(f'v_cvt_pk_bf16_f32 v{P+2*t3+1}, v{S+4*t3+2}, v{S+4*t3+3}')
            else:
                a(f'v_mov_b32 v{P+2*t3}, 0')
                a(f'v_mov_b32 v{P+2*t3+1}, 0')
        a(f'v_add_f32 v{l_}, v{regs[0]}, v{regs[1]}')
        for r in regs[2:]:
            a(f'v_add_f32 v{l_}, v{l_}, v{r}')
        if qt == 0: a('s_branch P_pv')
    a.label('P_pv')
    for ct in range(8):
        a(f'v_mfma_f32_16x16x32_bf16 v[{O+4*ct}:{O+4*ct+3}], v[{VX+4*ct}:{VX+4*ct+3}], v[{P}:{P+3}], 0')
    for ct in range(8):
        a(f'v_mfma_f32_16x16x16_bf16 v[{O+4*ct}:{O+4*ct+3}], v[{VM+2*ct}:{VM+2*ct+1}], v[{P+4}:{P+5}], v[{O+4*ct}:{O+4*ct+3}]')
    for sw in ('32', '16'):
        a(f'v_mov_b32 v{t_}, v{l_}')
        a('s_nop 1')
        a(f'v_permlane{sw}_swap_b32 v{l_}, v{t_}')
        a(f'v_add_f32 v{l_}, v{l_}, v{t_}')
    a(f'v_rcp_f32 v{l_}, v{l_}')
    a('s_nop 0')
    for u2 in range(4):
        for r in range(8):
            a(f'v_mul_f32 v{O+8*u2+r}, v{O+8*u2+r}, v{l_}')
        for p in range(4):
            a(f'v_cvt_pk_bf16_f32 v{O+8*u2+p}, v{O+8*u2+2*p}, v{O+8*u2+2*p+1}')
        a(f'buffer_store_dwordx4 v[{O+8*u2}:{O+8*u2+3}], v{VL}, s[28:31], s37 offen offset:{u2*1024} sc1')
    a(f's_add_u32 s73, s72, {CNT_O}')
    flag_add(a, 73)
    srd(a, 8, 6, WOF, 8*128*5120)
    srd(a, 16, 6, OF, 0x1000000)
    flag_wait(a, 73, 8, done, 2)
    a('s_lshl_b32 s40, s72, 18')
    a('s_lshl_b32 s3, s33, 14')
    a('s_add_u32 s40, s40, s3')
    a('s_lshl_b32 s41, s70, 7')
    a('s_lshl_b32 s3, s33, 4')
    a('s_add_u32 s41, s41, s3')
    a('s_mul_i32 s41, s41, 5120')
    a('s_mov_b32 s42, 16')
    part('S', AS, 16, 8, 131072)
    a('s_nop 7')
    a('s_lshl_b32 s3, s33, 10')
    a(f'v_add_u32 v0, s3, v{VL}')
    a('s_lshl_b32 s3, s33, 13')
    a(f'v_add_u32 v1, s3, v{VL}')
    a(f'v_add_u32 v2, 40960, v1')
    a(f'v_add_u32 v3, 40960, v0')
    for gm, acc in ((0, AS), (1, AG)):
        a('s_barrier')
        for f in range(10):
            a(f'ds_write_b128 v{0 if f < 5 else 3}, v[{acc+4*f}:{acc+4*f+3}] offset:{(f%5)*8192}')
        a('s_waitcnt lgkmcnt(0)')
        a('s_barrier')
        a('s_cmp_ge_u32 s33, 5')
        a(f's_cbranch_scc1 P_nr{gm}')
        for i in range(2):
            for w in range(8):
                a(f'ds_read_b128 v[{16+(i*8+w)*4}:{19+(i*8+w)*4}], v{1+i} offset:{w*1024}')
        a('s_waitcnt lgkmcnt(0)')
        for i in range(2):
            o = 96 + gm*8 + i*4
            for r in range(4):
                a(f'v_add_f32 v{o+r}, v{16+i*32+r}, v{16+i*32+4+r}')
                for w in range(2, 8):
                    a(f'v_add_f32 v{o+r}, v{o+r}, v{16+i*32+4*w+r}')
        a.label(f'P_nr{gm}')
    a('s_cmp_ge_u32 s33, 5')
    a('s_cbranch_scc1 P_next')
    srd(a, 24, 68, 0, 2048*1280)
    srd(a, 28, 82, 0, 2048*1280)
    srd(a, 36, 66, 0, 1280)
    a(f'v_and_b32 v4, 15, v{LN}')
    a(f'v_lshrrev_b32 v5, 4, v{LN}')
    a('v_lshlrev_b32 v5, 3, v5')
    a('v_mul_u32_u24 v4, 1280, v4')
    a('v_add_u32 v4, v4, v5')
    a('v_add_u32 v6, 20480, v4')
    a('s_mul_i32 s3, s72, 40960')
    a('s_mul_i32 s35, s70, 160')
    a('s_lshl_b32 s34, s33, 5')
    a('s_add_u32 s35, s35, s34')
    a('s_add_u32 s3, s3, s35')
    a('buffer_load_dwordx2 v[8:9], v4, s[24:27], s3 offen')
    a('buffer_load_dwordx2 v[10:11], v6, s[24:27], s3 offen')
    a('buffer_load_dwordx2 v[12:13], v5, s[36:39], s35 offen')
    a('s_waitcnt vmcnt(0)')
    x0, x1, y0, y1, t = 16, 17, 18, 19, 20
    for i in range(2):
        for p in range(2):
            S0, G0 = 96+4*i+2*p, 104+4*i+2*p
            a(f'v_cvt_pk_bf16_f32 v{t}, v{G0}, v{G0+1}')
            a(f'v_lshlrev_b32 v{x0}, 16, v{t}')
            a(f'v_and_b32 v{x1}, 0xffff0000, v{t}')
            a(f'v_lshlrev_b32 v{y0}, 16, v{12+p}')
            a(f'v_and_b32 v{y1}, 0xffff0000, v{12+p}')
            a(f'v_add_f32 v{x0}, v{x0}, v{y0}')
            a(f'v_add_f32 v{x1}, v{x1}, v{y1}')
            a(f'v_cvt_pk_bf16_f32 v{t}, v{x0}, v{x1}')
            a(f'v_lshlrev_b32 v{x0}, 16, v{t}')
            a(f'v_and_b32 v{x1}, 0xffff0000, v{t}')
            a(f'v_mul_f32 v{y0}, 0xbfb8aa3b, v{x0}')
            a(f'v_mul_f32 v{y1}, 0xbfb8aa3b, v{x1}')
            a(f'v_exp_f32 v{y0}, v{y0}')
            a(f'v_exp_f32 v{y1}, v{y1}')
            a('s_nop 0')
            a(f'v_add_f32 v{y0}, 1.0, v{y0}')
            a(f'v_add_f32 v{y1}, 1.0, v{y1}')
            a(f'v_rcp_f32 v{y0}, v{y0}')
            a(f'v_rcp_f32 v{y1}, v{y1}')
            a('s_nop 0')
            a(f'v_mul_f32 v{x0}, v{x0}, v{y0}')
            a(f'v_mul_f32 v{x1}, v{x1}, v{y1}')
            a(f'v_cvt_pk_bf16_f32 v{t}, v{x0}, v{x1}')
            a(f'v_lshlrev_b32 v{x0}, 16, v{t}')
            a(f'v_and_b32 v{x1}, 0xffff0000, v{t}')
            a(f'v_cvt_pk_bf16_f32 v{t}, v{S0}, v{S0+1}')
            a(f'v_lshlrev_b32 v{y0}, 16, v{t}')
            a(f'v_and_b32 v{y1}, 0xffff0000, v{t}')
            a(f'v_mul_f32 v{x0}, v{x0}, v{y0}')
            a(f'v_mul_f32 v{x1}, v{x1}, v{y1}')
            a(f'v_cvt_pk_bf16_f32 v{t}, v{x0}, v{x1}')
            a(f'v_lshlrev_b32 v{x0}, 16, v{t}')
            a(f'v_and_b32 v{x1}, 0xffff0000, v{t}')
            a(f'v_lshlrev_b32 v{y0}, 16, v{8+2*i+p}')
            a(f'v_and_b32 v{y1}, 0xffff0000, v{8+2*i+p}')
            a(f'v_add_f32 v{x0}, v{x0}, v{y0}')
            a(f'v_add_f32 v{x1}, v{x1}, v{y1}')
            a(f'v_cvt_pk_bf16_f32 v{24+2*i+p}, v{x0}, v{x1}')
        a(f'buffer_store_dwordx2 v[{24+2*i}:{25+2*i}], v{4 if i == 0 else 6}, s[28:31], s3 offen')
    a.label('P_next')
    a('s_add_u32 s72, s72, 16')
    a('s_cmp_lt_u32 s72, 64')
    a('s_cbranch_scc1 P_loop')

def gen_mega(a):
    name = 'mega_kernel'
    kernel_begin(a, name)
    a('s_cmp_ge_u32 s2, 256')
    a('s_cbranch_scc1 M_done0')
    DG = int(os.environ.get('DIAG', '0'))
    if DG:
        a('s_memrealtime s[84:85]')
    register(a, 'M_done0')
    def dstamp(slot, ptr):
        if DG:
            a('s_memrealtime s[86:87]')
            a('s_waitcnt lgkmcnt(0)')
            srd(a, 88, ptr, 0x8800000, 65536)
            a('s_lshl_b32 s3, s2, 5')
            a(f'v_mov_b32 v254, {slot*8}')
            a('v_mov_b32 v252, s84'); a('v_mov_b32 v253, s86')
            a('buffer_store_dwordx2 v[252:253], v254, s[88:91], s3 offen')
    dstamp(0, 58)
    a('s_cmp_ge_u32 s41, 16')
    a('s_cbranch_scc1 M_worker')
    chain_body(a, 'M_done', kvwait)
    a.label('M_done0')
    a.label('M_done')
    a('s_endpgm')
    a.label('M_worker')
    worker(a, 'M_done2')
    dstamp(1, 6)
    a.label('M_done2')
    a('s_endpgm')
    return name, dict(vgpr=256, grid=256, block=512, lds=131072)
```

```python
import sys
from gen import build
from k0 import gen_k0
from mega import gen_mega
build([gen_k0, gen_mega], sys.argv[1] if len(sys.argv) > 1 else 'recurrent_scan__memory_aug_recurrent_mem_tr__dense_activation_squared_relu__prompt.s')
```

```python
from fw import *
import struct, os
def f2u(x): return struct.unpack('<I', struct.pack('<f', x))[0]
CEXP = f2u((128 ** -0.5) * 1.4426950408889634)
DIAG = int(os.environ.get('DIAG', '0'))
DBGT = 0x8000000
PACE = int(os.environ.get('PACE', '0'))
DPOS = int(os.environ.get('DPOS', '0'))
DSLP = int(os.environ.get('DSLP', '8'))
SLOT = 5120
DUMP = 15360
KVB = 16384
def stamp(a, i):
    if DIAG: a(f's_memrealtime s[{64+2*i}:{65+2*i}]')
def flush(a, adj=0):
    if DIAG:
        a('s_waitcnt lgkmcnt(0)')
        a('s_mov_b64 s[90:91], exec')
        a('s_mov_b64 exec, 1')
        a('s_lshl_b32 s88, s40, 5'); a('s_add_u32 s88, s88, s41'); a('s_lshl_b32 s88, s88, 3'); a('s_add_u32 s88, s88, s33')
        a('s_lshl_b32 s88, s88, 6'); a('s_add_u32 s88, s88, s43'); a(f's_sub_u32 s88, s88, {adj}'); a('s_lshl_b32 s88, s88, 5')
        a('v_mov_b32 v251, 0')
        for h in range(2):
            for i in range(4):
                a(f'v_mov_b32 v{252+i}, s{64+2*(4*h+i)}' if 4*h+i < 7 else 'v_mov_b32 v255, s44')
            a(f'buffer_store_dwordx4 v[252:255], v251, s[84:87], s88 offen offset:{16*h}')
            a('s_nop 1')
        a('s_mov_b64 exec, s[90:91]')

def xstore(a, instr):
    l1 = a.newlabel('XS'); l2 = a.newlabel('XD')
    a('s_cmp_lg_u32 s42, 0')
    a(f's_cbranch_scc1 {l1}')
    a(instr)
    a(f's_branch {l2}')
    a.label(l1)
    a(instr + ' sc1')
    a.label(l2)

def maxops(regs, t):
    regs = list(regs)
    ops = [f'v_max3_u32 v{t}, v{regs[0]}, v{regs[1]}, v{regs[2]}']
    i = 3
    while i + 1 < len(regs):
        ops.append(f'v_max3_u32 v{t}, v{t}, v{regs[i]}, v{regs[i+1]}'); i += 2
    if i < len(regs):
        ops.append(f'v_max_u32 v{t}, v{t}, v{regs[i]}')
    ops.append(f'v_cmp_eq_u32 vcc, -1, v{t}')
    return ops

def poll_setup(a, VL, vaddr, vlds, rel_sreg):
    a(f's_add_u32 s97, s40, s{rel_sreg}')
    a('s_add_u32 s97, s97, 1')
    a('s_and_b32 s97, s97, 7')
    a('s_lshl_b32 s98, s97, 4')
    a('s_add_u32 s98, s98, s41')
    a('s_mul_i32 s98, s98, 640')
    a(f'v_add_u32 v{vaddr}, s98, v{VL}')
    a('s_mul_i32 s98, s97, 640')
    a(f's_add_u32 s98, s98, {SLOT}')
    a(f'v_add_u32 v{vlds}, s98, v{VL}')

PSTEP = 81920
def touch_part(a, vaddrs, d, ahead):
    a(f's_add_u32 s98, s96, {PSTEP*ahead}')
    a('s_mov_b32 exec_hi, 0xff')
    for va in vaddrs:
        a(f'buffer_load_dwordx4 v[{d}:{d+3}], v{va}, s[92:95], s98 offen')
    a('s_mov_b32 exec_hi, -1')

def poll_remote(a, tag, srcs, t, done):
    a('s_mov_b32 exec_hi, 0xff')
    a.label(f'C_pr{tag}')
    for va, vl, d in srcs:
        a(f'buffer_load_dwordx4 v[{d}:{d+3}], v{va}, s[92:95], s96 offen sc1')
    a('s_waitcnt vmcnt(0)')
    regs = [r for va, vl, d in srcs for r in range(d, d+4)]
    for o in maxops(regs, t): a(o)
    a(f's_cbranch_vccz C_pk{tag}')
    a('s_sub_u32 s44, s44, 1')
    a(f's_cbranch_scc0 C_pr{tag}')
    a(f's_branch {done}')
    a.label(f'C_pk{tag}')
    for va, vl, d in srcs:
        a(f'ds_write_b128 v{vl}, v[{d}:{d+3}]')
    a('s_mov_b32 exec_hi, -1')
    a(f's_add_u32 s96, s96, {PSTEP}')
    a('s_waitcnt lgkmcnt(0)')
    a('s_barrier')

def chain_body(a, done, kvwait=None):
    a('s_mov_b32 s43, 0')
    if DIAG:
        srd(a, 84, 58, DBGT, 256*8*64*32)
    a('s_cmp_lt_u32 s33, 4')
    a('s_cbranch_scc1 C_attn')
    a('s_cmp_eq_u32 s33, 7')
    a('s_cbranch_scc1 C_red')
    MF, AC, VL = 160, 200, 216
    a('s_cmp_eq_u32 s33, 4')
    a('s_cselect_b32 s4, s48, s50'); a('s_cselect_b32 s5, s49, s51')
    a('s_cmp_eq_u32 s33, 6')
    a('s_cselect_b32 s4, s52, s4'); a('s_cselect_b32 s5, s53, s5')
    a(f's_mov_b32 s6, {640*8192}'); a('s_mov_b32 s7, 0x20000')
    a('s_lshr_b32 s46, s41, 2')
    a('s_lshl_b32 s3, s40, 2')
    a('s_add_u32 s46, s46, s3')
    a('s_and_b32 s47, s41, 3')
    a(f'v_lshlrev_b32 v{VL}, 4, v0')
    a('s_lshl_b32 s3, s46, 8')
    a('s_lshl_b32 s8, s47, 6')
    a('s_add_u32 s3, s3, s8')
    a('v_lshrrev_b32 v240, 2, v0')
    a('v_lshlrev_b32 v240, 13, v240')
    a('v_and_b32 v239, 3, v0')
    a('v_lshl_add_u32 v240, v239, 4, v240')
    a('v_add_u32 v240, s3, v240')
    a('s_sub_u32 s8, s33, 4')
    a('s_mul_i32 s8, s8, 20480')
    a(f's_add_u32 s8, s8, {KVB}')
    a('v_lshrrev_b32 v238, 4, v0')
    a('v_bfe_u32 v237, v0, 2, 2')
    a('v_lshl_add_u32 v238, v238, 3, v237')
    a('v_lshlrev_b32 v238, 6, v238')
    a('v_lshl_add_u32 v238, v239, 3, v238')
    a('v_add_u32 v238, s8, v238')
    for half in range(2):
        for j in range(20):
            a(f's_add_u32 m0, s8, {j*1024}')
            a(f's_mov_b32 s3, {(half*320 + j*16)*8192}')
            a('buffer_load_dwordx4 v240, s[4:7], s3 offen lds')
        a('s_waitcnt vmcnt(0)')
        for k2 in range(10):
            kk = half*10 + k2
            for z in range(2):
                r = (kk*2+z)*4
                a(f'ds_read_b64_tr_b16 v[{r}:{r+1}], v238 offset:{k2*2048 + 32*z}')
                a(f'ds_read_b64_tr_b16 v[{r+2}:{r+3}], v238 offset:{k2*2048 + 256 + 32*z}')
        a('s_waitcnt lgkmcnt(0)')
    a('s_barrier')
    srd(a, 8, 58, MEMB, 64*MEMSLOT)
    a('s_mul_i32 s16, s40, 10240')
    a('s_cmp_eq_u32 s33, 6')
    a('s_cbranch_scc1 C_vsetup')
    srd(a, 12, 58, CQK, 64*32*4096)
    a('s_lshl_b32 s3, s47, 10')
    a('s_sub_u32 s17, s33, 4'); a('s_lshl_b32 s17, s17, 7'); a('s_add_u32 s3, s3, s17')
    a('s_lshl_b32 s17, s46, 12'); a('s_add_u32 s3, s3, s17')
    a('s_mov_b32 s18, 131072')
    a('s_mov_b32 s20, 0x00ff00ff'); a('s_mov_b32 s21, 0x00ff00ff')
    a('s_branch C_qkv_go')
    a.label('C_vsetup')
    srd(a, 12, 58, CV, 64*32*2048)
    a('s_lshl_b32 s3, s47, 9')
    a('s_lshl_b32 s17, s46, 11'); a('s_add_u32 s3, s3, s17')
    a('s_mov_b32 s18, 65536')
    a('s_mov_b32 s20, -1'); a('s_mov_b32 s21, 0')
    a.label('C_qkv_go')
    a(f'v_add_u32 v217, s3, v{VL}')
    a(f'v_add_u32 v218, 4096, v{VL}')
    a(f'v_add_u32 v219, 8192, v{VL}')
    a('s_setprio 2')
    a('s_mov_b32 s17, 0')
    srd(a, 24, 58, KF, 0x2000000)
    a('s_lshl_b32 s28, s40, 14')
    a('s_lshl_b32 s29, s40, 15')
    a('s_add_u32 s29, s29, 0x1000000')
    def frag_rel(q):
        head, f, isv = q >> 4, q & 7, (q >> 3) & 1
        return isv, (head*8192 + f*1024 if isv else head*4096 + (f >> 2)*131072 + (f & 3)*1024)
    def dma_kv(tag):
        rng = [(0, 22), (22, 43), (43, 64)]
        for m in range(3):
            if tag[0] == 'V' and m < 2: continue
            if tag[0] == 'Q' and m == 2: continue
            if tag[0] != 'V' and m < (1 if tag[0] == 'Q' else 2):
                a(f's_cmp_lg_u32 s33, {4+m}')
                a(f's_cbranch_scc1 C_dma{tag}{m+1}')
            for q in range(*rng[m]):
                isv, rel = frag_rel(q)
                a(f's_mov_b32 m0, {KVB + q*1024}')
                a(f's_add_u32 s34, s{29 if isv else 28}, {rel}')
                a(f'buffer_load_dwordx4 v{VL}, s[24:27], s34 offen sc1 lds')
                if PACE and tag != '0': a(f's_sleep {PACE}')
            a(f's_branch C_dmae{tag}')
            a.label(f'C_dma{tag}{m+1}')
        a.label(f'C_dmae{tag}')
        a('s_add_u32 s28, s28, 262144')
        a('s_add_u32 s29, s29, 262144')
    a('s_lshl_b32 s31, s41, 2')
    a('s_lshl_b32 s3, s33, 1')
    a('s_add_u32 s31, s31, s3')
    a('s_sub_u32 s31, s31, 8')
    a('s_lshr_b32 s34, s31, 4')
    a('s_and_b32 s35, s31, 7')
    a('s_bfe_u32 s31, s31, 0x10003')
    a('s_lshl_b32 s30, s34, 13')
    a('s_lshl_b32 s36, s35, 10')
    a('s_add_u32 s30, s30, s36')
    a('s_lshl_b32 s34, s34, 12')
    a('s_lshr_b32 s36, s35, 2'); a('s_lshl_b32 s36, s36, 17'); a('s_add_u32 s34, s34, s36')
    a('s_and_b32 s36, s35, 3'); a('s_lshl_b32 s36, s36, 10'); a('s_add_u32 s34, s34, s36')
    a('s_cmp_eq_u32 s31, 0')
    a('s_cmov_b32 s30, s34')
    def warm(tag, ahead):
        a('s_cmp_eq_u32 s33, 6')
        a(f's_cbranch_scc1 C_wd{tag}')
        a('s_cmp_eq_u32 s31, 0')
        a('s_cselect_b32 s34, s28, s29')
        a('s_add_u32 s34, s34, s30')
        a(f's_add_u32 s34, s34, {262144*ahead}')
        a(f'buffer_load_dwordx4 v[232:235], v{VL}, s[24:27], s34 offen')
        a(f'buffer_load_dwordx4 v[232:235], v{VL}, s[24:27], s34 offen offset:1024')
        a.label(f'C_wd{tag}')
    srd(a, 60, 58, MEMB, PART - MEMB)
    a('s_lshl_b32 s36, s41, 10')
    a('s_lshl_b32 s37, s40, 14'); a('s_add_u32 s37, s37, s36'); a(f's_add_u32 s37, s37, {CQK - MEMB}')
    a('s_lshl_b32 s38, s40, 13'); a('s_add_u32 s38, s38, s36'); a(f's_add_u32 s38, s38, {CV - MEMB}')
    a('s_mov_b32 s39, 65536')
    a('s_mul_i32 s100, s40, 10240'); a('s_add_u32 s100, s100, s36')
    a('s_cmp_lt_u32 s41, 8')
    a('s_cbranch_scc1 C_tch_ok')
    a('s_sub_u32 s38, s100, 8192')
    a(f's_mov_b32 s39, {MEMSLOT}')
    a.label('C_tch_ok')
    a('s_add_u32 s100, s100, 8192')
    def touch_x(tag):
        a('s_cmp_lg_u32 s33, 6')
        a(f's_cbranch_scc1 C_tx{tag}')
        a(f'buffer_load_dwordx4 v[232:235], v{VL}, s[60:63], s37 offen')
        a(f'buffer_load_dwordx4 v[232:235], v{VL}, s[60:63], s38 offen')
        a('s_add_u32 s37, s37, 131072')
        a('s_add_u32 s38, s38, s39')
        a('s_cmp_gt_u32 s41, 1')
        a(f's_cbranch_scc1 C_tx{tag}')
        a(f'buffer_load_dwordx4 v[232:235], v{VL}, s[60:63], s100 offen')
        a(f's_add_u32 s100, s100, {MEMSLOT}')
        a.label(f'C_tx{tag}')
    touch_x('a'); touch_x('b')
    if kvwait: kvwait(a, 'i')
    warm('a', 1); warm('b', 2)
    dma_kv('0')
    a('s_waitcnt vmcnt(0)')
    a('s_barrier')
    def mload(j):
        a(f'buffer_load_dwordx4 v[{MF+4*j}:{MF+3+4*j}], v{VL if j < 4 else 218 if j < 8 else 219}, s[8:11], s16 offen offset:{1024*(j%4)} sc1')
    for isV in (False, True):
        sfx = 'V' if isV else 'Q'
        if not isV:
            a('s_cmp_eq_u32 s33, 6')
            a('s_cbranch_scc1 C_qkv_loopV')
        a.label(f'C_qkv_loop{sfx}')
        stamp(a, 0)
        for j in range(10):
            mload(j)
        def chk(g): return maxops(range(MF+8*g, MF+8+8*g), 222)
        def mm(kk, z):
            j = kk >> 1
            D = AC + (z*2 + (kk & 1))*4
            W = (kk*2+z)*4
            C = '0' if kk < 2 else f'v[{D}:{D+3}]'
            if isV:
                a(f'v_mfma_f32_16x16x32_bf16 v[{D}:{D+3}], v[{MF+4*j}:{MF+3+4*j}], v[{W}:{W+3}], {C}')
            else:
                a(f'v_mfma_f32_16x16x32_bf16 v[{D}:{D+3}], v[{W}:{W+3}], v[{MF+4*j}:{MF+3+4*j}], {C}')
        a.label(f'C_qchk{sfx}0')
        a('s_waitcnt vmcnt(8)')
        for o in chk(0): a(o)
        a(f's_cbranch_vccnz C_qret{sfx}0')
        stamp(a, 1)
        for g in range(5):
            a.label(f'C_qmm{sfx}{g}')
            seq = [(4*g+i, z) for i in range(4) for z in range(2)]
            for n, (kk, z) in enumerate(seq):
                mm(kk, z)
                if g < 4:
                    ops = chk(g+1)
                    if n == 3: a(f's_waitcnt vmcnt({2*(3-g)})')
                    if n == 4: a(ops[0]); a(ops[1])
                    if n == 5: a(ops[2]); a(ops[3])
                    if n == 6: a(ops[4])
            if g < 4:
                a(f's_cbranch_vccnz C_qret{sfx}{g+1}')
                if g == 3: stamp(a, 2)
        a('s_nop 6')
        for z in range(2):
            D1, D2 = AC + z*8, AC + z*8 + 4
            if isV:
                for r in range(4):
                    a(f'v_permlane32_swap_b32 v{D2+r}, v{224+r}')
                for r in range(4):
                    a(f'v_add_f32 v{D1+r}, v{D1+r}, v{224+r}')
            else:
                for r in range(4):
                    a(f'v_add_f32_dpp v{D1+r}, v{D2+r}, v{D1+r} row_ror:8 row_mask:0xf bank_mask:0xf')
        for z in range(2):
            D1 = AC + z*8
            a(f'v_cvt_pk_bf16_f32 v{224+2*z}, v{D1}, v{D1+1}')
            a(f'v_cvt_pk_bf16_f32 v{225+2*z}, v{D1+2}, v{D1+3}')
        for r in range(4):
            a(f'v_min_u32 v{224+r}, -2, v{224+r}')
        a('s_mov_b64 exec, s[20:21]')
        xstore(a, 'buffer_store_dwordx4 v[224:227], v217, s[12:15], s17 offen')
        a('s_mov_b64 exec, -1')
        stamp(a, 3)
        a('s_add_u32 s43, s43, 1')
        a('s_cmp_ge_u32 s43, 64')
        a(f's_cbranch_scc1 {done}')
        a('s_add_u32 s17, s17, s18')
        a(f's_add_u32 s16, s16, {MEMSLOT}')
        a('s_barrier')
        if DPOS == 1: a('s_barrier')
        a('s_setprio 0')
        if DPOS == 0: a(f's_sleep {DSLP}')
        stamp(a, 4)
        dma_kv(sfx)
        touch_x(sfx)
        warm(sfx, 1)
        stamp(a, 5)
        a('s_setprio 2')
        if DPOS == 0: a('s_barrier')
        if kvwait: kvwait(a, sfx)
        a('s_barrier')
        a('s_waitcnt vmcnt(0)')
        flush(a, 1)
        a('s_barrier')
        a(f's_branch C_qkv_loop{sfx}')
        for g in range(5):
            a.label(f'C_qret{sfx}{g}')
            a('s_sub_u32 s44, s44, 1')
            a(f's_cbranch_scc1 {done}')
            a('s_waitcnt vmcnt(0)')
            for j in range(2*g, 10):
                mload(j)
            if g == 0:
                a(f's_branch C_qchk{sfx}0')
            else:
                a(f's_waitcnt vmcnt({2*(4-g)})')
                for o in chk(g): a(o)
                a(f's_cbranch_vccz C_qmm{sfx}{g}')
                a(f's_branch C_qret{sfx}{g}')

    a.label('C_red')
    srd(a, 8, 58, PART, 64*163840)
    srd(a, 12, 58, MEMB, 64*MEMSLOT)
    a('v_lshlrev_b32 v1, 4, v0')
    a('v_lshlrev_b32 v2, 3, v0')
    a('s_lshl_b32 s3, s40, 4'); a('s_add_u32 s3, s3, s41'); a('s_mul_i32 s3, s3, 640')
    a('v_add_u32 v3, s3, v2')
    a('s_mul_i32 s3, s40, 640'); a(f's_add_u32 s3, s3, {SLOT}')
    a('v_add_u32 v7, s3, v2')
    a('s_mul_i32 s16, s40, 10240')
    for P_, add in ((4, 0), (5, 8)):
        a('v_lshrrev_b32 v8, 3, v0')
        if add: a(f'v_add_u32 v8, {add}, v8')
        a('s_mul_i32 s3, s41, 40')
        a('v_lshl_add_u32 v8, v8, 2, s3')
        a(f'v_and_b32 v{P_}, 7, v0')
        a(f'v_lshlrev_b32 v{P_}, 4, v{P_}')
        a('v_lshrrev_b32 v6, 6, v8');  a(f'v_lshl_add_u32 v{P_}, v6, 10, v{P_}')
        a('v_bfe_u32 v6, v8, 3, 2');   a(f'v_lshl_add_u32 v{P_}, v6, 8, v{P_}')
        a('v_bfe_u32 v6, v8, 5, 1');   a(f'v_lshl_add_u32 v{P_}, v6, 7, v{P_}')
        a('v_bfe_u32 v6, v8, 2, 1');   a(f'v_lshl_add_u32 v{P_}, v6, 3, v{P_}')
        a(f'v_add_u32 v{P_}, s16, v{P_}')
    srd(a, 92, 58, PART, 64*163840)
    a('s_mov_b32 s96, 0')
    a('s_mov_b32 s22, 0x00003f80')
    a('s_mov_b32 s23, 0x3f800000')
    a('s_mov_b32 s3, 6')
    poll_setup(a, 1, 112, 113, 3)
    for r in range(4): a(f'v_mov_b32 v{120+r}, 0')
    touch_part(a, [112], 124, 0); touch_part(a, [112], 124, 1)
    a('s_mov_b32 s16, 0')
    a(f's_mov_b32 s17, {MEMSLOT}')
    a('s_setprio 3')
    a('s_barrier')
    a('s_barrier')
    a.label('C_red_loop')
    a('s_barrier')
    a('s_barrier')
    stamp(a, 0)
    for w in range(4):
        a(f'ds_read_b128 v[{16+4*w}:{19+4*w}], v1 offset:{1280*w}')
    for w in range(4):
        a(f'ds_read_b128 v[{32+4*w}:{35+4*w}], v1 offset:{1280*w+1024}')
    for b, n in ((16, 4), (32, 0)):
        a(f's_waitcnt lgkmcnt({n})')
        for r in range(4):
            a(f'v_add_f32 v{b+r}, v{b+r}, v{b+4+r}')
            a(f'v_add_f32 v{b+8+r}, v{b+8+r}, v{b+12+r}')
        for r in range(4):
            a(f'v_add_f32 v{b+r}, v{b+r}, v{b+8+r}')
        a(f'v_cvt_pk_bf16_f32 v{b}, v{b}, v{b+1}')
        a(f'v_cvt_pk_bf16_f32 v{b+1}, v{b+2}, v{b+3}')
        a(f'v_min_u32 v{b}, -2, v{b}')
        a(f'v_min_u32 v{b+1}, -2, v{b+1}')
        if b == 32: a('s_mov_b64 exec, 0xffff')
        a(f'buffer_store_dwordx2 v[{b}:{b+1}], v3, s[8:11], s16 offen offset:{0 if b == 16 else 512} sc1')
    stamp(a, 1)
    a('ds_write_b64 v7, v[32:33] offset:512')
    a('s_mov_b64 exec, -1')
    a('ds_write_b64 v7, v[16:17]')
    poll_remote(a, 'R', [(112, 113, 116)], 114, done)
    stamp(a, 2)
    for xx in range(8):
        a(f'ds_read_b64 v[{48+2*xx}:{49+2*xx}], v2 offset:{SLOT+640*xx}')
    for xx in range(8):
        a(f'ds_read_b64 v[{80+2*xx}:{81+2*xx}], v2 offset:{SLOT+640*xx+512}')
    for b, o, ad, base_cnt in ((48, 20, 4, 8), (80, 28, 5, 0)):
        for xx in range(8):
            a(f's_waitcnt lgkmcnt({base_cnt+7-xx})')
            for p in range(2):
                if xx == 0:
                    a(f'v_lshlrev_b32 v{o+2*p}, 16, v{b+p}')
                    a(f'v_and_b32 v{o+2*p+1}, 0xffff0000, v{b+p}')
                else:
                    a(f'v_dot2c_f32_bf16 v{o+2*p}, s22, v{b+2*xx+p}')
                    a(f'v_dot2c_f32_bf16 v{o+2*p+1}, s23, v{b+2*xx+p}')
        a('s_nop 2')
        a(f'v_cvt_pk_bf16_f32 v{o+4}, v{o}, v{o+1}')
        a(f'v_cvt_pk_bf16_f32 v{o+5}, v{o+2}, v{o+3}')
        a(f'v_min_u32 v{o+4}, -2, v{o+4}')
        a(f'v_min_u32 v{o+5}, -2, v{o+5}')
        if b == 80: a('s_mov_b64 exec, 0xffff')
        xstore(a, f'buffer_store_dwordx2 v[{o+4}:{o+5}], v{ad}, s[12:15], s17 offen')
    a('s_mov_b64 exec, -1')
    stamp(a, 3)
    a('s_barrier')
    touch_part(a, [112], 124, 1)
    flush(a)
    a('s_add_u32 s43, s43, 1')
    a('s_cmp_ge_u32 s43, 63')
    a(f's_cbranch_scc1 {done}')
    a(f's_add_u32 s16, s16, {PSTEP}')
    a(f's_add_u32 s17, s17, {MEMSLOT}')
    a('s_branch C_red_loop')

    KX, VX, WO, Q, VM, S, BIAS, P, O, OB, RR = 0, 32, 64, 112, 128, 144, 156, 160, 168, 200, 216
    VL = 228
    a.label('C_attn')
    a('s_lshl_b32 s46, s40, 2')
    a('s_add_u32 s46, s46, s33')
    a(f'v_lshlrev_b32 v{VL}, 4, v0')
    srd(a, 4, 54, 0, 4096*1280)
    a('s_mul_i32 s3, s46, 163840')
    a('s_mul_i32 s8, s41, 80')
    a('s_add_u32 s3, s3, s8')
    a('s_mul_i32 s8, s33, 12288')
    a('s_add_u32 s8, s8, 81920')
    a('s_mov_b32 s9, 0x2aaaaaab')
    for j in range(12):
        a(f'v_add_u32 v240, {64*j}, v0')
        a('v_mul_hi_u32 v241, v240, s9')
        a('v_mul_u32_u24 v242, 6, v241')
        a('v_sub_u32 v242, v240, v242')
        a('v_mul_u32_u24 v241, 1280, v241')
        a('v_lshl_add_u32 v241, v242, 4, v241')
        a(f's_add_u32 m0, s8, {j*1024}')
        a('s_nop 0')
        a('buffer_load_dwordx4 v241, s[4:7], s3 offen lds')
    a('v_lshrrev_b32 v238, 2, v0')
    a('v_mul_u32_u24 v238, 96, v238')
    a('v_and_b32 v239, 3, v0')
    a('v_lshl_add_u32 v238, v239, 3, v238')
    a('v_add_u32 v238, s8, v238')
    a('s_waitcnt vmcnt(0)')
    for tile in range(3):
        for u in range(4):
            r = WO + (tile*4+u)*4
            a(f'ds_read_b64_tr_b16 v[{r}:{r+1}], v238 offset:{u*3072 + tile*32}')
            a(f'ds_read_b64_tr_b16 v[{r+2}:{r+3}], v238 offset:{u*3072 + 1536 + tile*32}')
    a('s_waitcnt lgkmcnt(0)')
    a('s_barrier')
    srd(a, 16, 58, CQK, 64*32*4096)
    srd(a, 20, 58, CV, 64*32*2048)
    a('s_lshl_b32 s3, s33, 14')
    a(f's_add_u32 s3, s3, {KVB}')
    a(f'v_add_u32 v229, s3, v{VL}')
    a('v_and_b32 v230, 31, v0')
    a('v_lshlrev_b32 v230, 4, v230')
    a('v_and_b32 v240, 7, v0')
    a('v_lshlrev_b32 v240, 4, v240')
    a('v_lshrrev_b32 v241, 4, v0')
    a('v_lshl_add_u32 v240, v241, 7, v240')
    a('s_mul_i32 s3, s33, 1280')
    a('v_add_u32 v240, s3, v240')
    a(f'v_add_u32 v242, {DUMP}, v{VL}')
    a('v_and_b32 v241, 15, v0')
    a('v_cmp_gt_u32 vcc, 8, v241')
    a('v_cmp_gt_u32 s[10:11], 32, v0')
    a('s_and_b64 s[10:11], s[10:11], vcc')
    a('v_add_u32 v241, 512, v240')
    a('v_add_u32 v243, 1024, v240')
    a('v_cndmask_b32 v231, v242, v240, vcc')
    a('v_cndmask_b32 v232, v242, v241, vcc')
    a('v_cndmask_b32 v233, v242, v243, s[10:11]')
    a('v_mov_b32 v234, 0xf149f2ca')
    a('v_cmp_gt_u32 vcc, 32, v0')
    a('s_nop 1')
    for r in range(4):
        a(f'v_cndmask_b32 v{BIAS+r}, 0, v234, vcc')
    for r in range(16):
        a(f'v_mov_b32 v{VM+r}, 0')
    a('s_lshl_b32 s26, s46, 12')
    a('s_lshl_b32 s27, s46, 11')
    a(f's_mov_b32 s28, 0x{CEXP:x}')
    srd(a, 92, 58, PART, 64*163840)
    a('s_mov_b32 s96, 0')
    poll_setup(a, VL, 237, 238, 33)
    a('s_add_u32 s3, s33, 4')
    poll_setup(a, VL, 166, 167, 3)
    for r in range(4): a(f'v_mov_b32 v{244+r}, 0')
    touch_part(a, [237, 166], 248, 0); touch_part(a, [237, 166], 248, 1)
    def prefetch():
        for f in range(16):
            a(f'ds_read_b128 v[{KX+4*f}:{KX+4*f+3}], v229 offset:{f*1024}')
        a('s_waitcnt lgkmcnt(0)')
    def ld_qk():
        for u in range(4):
            a(f'buffer_load_dwordx4 v[{Q+4*u}:{Q+4*u+3}], v{VL}, s[16:19], s26 offen offset:{u*1024} sc1')
    def ld_vm():
        a('s_mov_b32 exec_lo, 0')
        for u in range(4):
            a(f'buffer_load_dwordx4 v[{VM+4*u}:{VM+4*u+3}], v230, s[20:23], s27 offen offset:{u*512} sc1')
        a('s_mov_b32 exec_lo, -1')
    a('s_setprio 1')
    a('s_barrier')
    prefetch()
    a.label('C_at_loop')
    a('s_barrier')
    stamp(a, 0)
    ld_qk()
    ld_vm()
    a.label('C_at_chk')
    a('s_waitcnt vmcnt(4)')
    m_, t_, l_ = 234, 235, 236
    for o in maxops(range(Q, Q+16), m_): a(o)
    a('s_cbranch_vccnz C_at_ret')
    stamp(a, 1)
    def smm(t3, u):
        A = (KX + (t3*4+u)*4) if t3 < 2 else Q + 4*u
        acc = S + 4*t3
        C = (f'v[{BIAS}:{BIAS+3}]' if t3 == 2 else '0') if u == 0 else f'v[{acc}:{acc+3}]'
        a(f'v_mfma_f32_16x16x32_bf16 v[{acc}:{acc+3}], v[{A}:{A+3}], v[{Q+4*u}:{Q+4*u+3}], {C}')
    for u in range(4): smm(0, u)
    a('s_waitcnt vmcnt(0)')
    vops = maxops(range(VM, VM+16), t_)
    for u in range(4):
        smm(1, u)
        a(vops[2*u]); a(vops[2*u+1])
    a(vops[8])
    a('s_cbranch_vccnz C_at_vret')
    a.label('C_at_vok')
    stamp(a, 3)
    smm(2, 0)
    a(f'v_max3_f32 v{m_}, v{S}, v{S+1}, v{S+2}')
    smm(2, 1)
    a(f'v_max_f32 v{m_}, v{m_}, v{S+3}')
    smm(2, 2)
    smm(2, 3)
    a('s_nop 3')
    a(f'v_max3_f32 v{m_}, v{m_}, v{S+4}, v{S+5}')
    a(f'v_max3_f32 v{m_}, v{m_}, v{S+6}, v{S+7}')
    a('s_nop 1')
    a(f'v_max3_f32 v{m_}, v{m_}, v{S+8}, v{S+9}')
    a(f'v_max3_f32 v{m_}, v{m_}, v{S+10}, v{S+11}')
    for sw in ('32', '16'):
        a(f'v_mov_b32 v{t_}, v{m_}')
        a('s_nop 1')
        a(f'v_permlane{sw}_swap_b32 v{m_}, v{t_}')
        a(f'v_max_f32 v{m_}, v{m_}, v{t_}')
    a(f'v_mul_f32 v{m_}, s28, v{m_}')
    for i in range(8):
        a(f'v_fma_f32 v{S+i}, v{S+i}, s28, -v{m_}')
    for i in range(8):
        a(f'v_exp_f32 v{S+i}, v{S+i}')
    for i in range(8, 12):
        a(f'v_fma_f32 v{S+i}, v{S+i}, s28, -v{m_}')
    for i in range(4):
        a(f'v_cvt_pk_bf16_f32 v{P+i}, v{S+2*i}, v{S+2*i+1}')
    def pvx(ct): a(f'v_mfma_f32_16x16x32_bf16 v[{O+4*ct}:{O+4*ct+3}], v[{VX+4*ct}:{VX+4*ct+3}], v[{P}:{P+3}], 0')
    def pvm(ct): a(f'v_mfma_f32_16x16x16_bf16 v[{O+4*ct}:{O+4*ct+3}], v[{VM+2*ct}:{VM+2*ct+1}], v[{P+4}:{P+5}], v[{O+4*ct}:{O+4*ct+3}]')
    def cvo(u2):
        for hh in range(2):
            o = O + 4*(2*u2+hh)
            a(f'v_cvt_pk_bf16_f32 v{OB+4*u2+2*hh}, v{o}, v{o+1}')
            a(f'v_cvt_pk_bf16_f32 v{OB+4*u2+2*hh+1}, v{o+2}, v{o+3}')
    def wom(uu):
        for tile in range(3):
            C = '0' if uu == 0 else f'v[{RR+4*tile}:{RR+4*tile+3}]'
            a(f'v_mfma_f32_16x16x32_bf16 v[{RR+4*tile}:{RR+4*tile+3}], v[{WO+(tile*4+uu)*4}:{WO+(tile*4+uu)*4+3}], v[{OB+4*uu}:{OB+4*uu+3}], {C}')
    def ad(i): a(f'v_add_f32 v{l_}, v{l_}, v{S+i}')
    a(f'v_exp_f32 v{S+8}, v{S+8}')
    a(f'v_exp_f32 v{S+9}, v{S+9}')
    pvx(0)
    a(f'v_exp_f32 v{S+10}, v{S+10}')
    pvx(1)
    a(f'v_exp_f32 v{S+11}, v{S+11}')
    pvx(2)
    a(f'v_cvt_pk_bf16_f32 v{P+4}, v{S+8}, v{S+9}')
    a(f'v_cvt_pk_bf16_f32 v{P+5}, v{S+10}, v{S+11}')
    pvx(3)
    a(f'v_add_f32 v{l_}, v{S}, v{S+1}'); ad(2); ad(3)
    pvm(0); ad(4); ad(5)
    pvm(1); ad(6); ad(7)
    pvm(2); ad(8); ad(9)
    pvm(3); ad(10); ad(11)
    pvx(4)
    a(f'v_mov_b32 v{t_}, v{l_}')
    pvx(5)
    cvo(0)
    pvx(6)
    a(f'v_permlane32_swap_b32 v{l_}, v{t_}')
    pvx(7)
    cvo(1)
    pvm(4)
    a(f'v_add_f32 v{l_}, v{l_}, v{t_}')
    pvm(5)
    a(f'v_mov_b32 v{t_}, v{l_}')
    pvm(6)
    pvm(7)
    wom(0)
    a(f'v_permlane16_swap_b32 v{l_}, v{t_}')
    a(f'v_add_f32 v{l_}, v{l_}, v{t_}')
    wom(1)
    a(f'v_rcp_f32 v{l_}, v{l_}')
    cvo(2)
    cvo(3)
    wom(2)
    wom(3)
    a('s_nop 5')
    for r in range(12):
        a(f'v_mul_f32 v{RR+r}, v{RR+r}, v{l_}')
    for tile in range(3):
        a(f'ds_write_b128 v{231+tile}, v[{RR+4*tile}:{RR+4*tile+3}]')
    a('s_waitcnt lgkmcnt(0)')
    stamp(a, 4)
    a('s_barrier')
    a('s_cmp_gt_u32 s33, 1')
    a('s_cbranch_scc1 C_p1')
    poll_remote(a, 'A2', [(237, 238, 240), (166, 167, O)], 239, done)
    touch_part(a, [237, 166], 248, 1)
    a('s_branch C_p1e')
    a.label('C_p1')
    poll_remote(a, 'A1', [(237, 238, 240)], 239, done)
    touch_part(a, [237], 248, 1)
    a.label('C_p1e')
    flush(a)
    a('s_add_u32 s43, s43, 1')
    a('s_cmp_ge_u32 s43, 63')
    a(f's_cbranch_scc1 {done}')
    a('s_add_u32 s26, s26, 131072')
    a('s_add_u32 s27, s27, 65536')
    a('s_barrier')
    prefetch()
    a('s_branch C_at_loop')
    a.label('C_at_ret')
    a('s_sub_u32 s44, s44, 1')
    a(f's_cbranch_scc1 {done}')
    a('s_waitcnt vmcnt(0)')
    ld_qk()
    ld_vm()
    a('s_branch C_at_chk')
    a.label('C_at_vret')
    a('s_sub_u32 s44, s44, 1')
    a(f's_cbranch_scc1 {done}')
    ld_vm()
    a('s_waitcnt vmcnt(0)')
    for o in maxops(range(VM, VM+16), t_): a(o)
    a('s_cbranch_vccz C_at_vok')
    a('s_branch C_at_vret')

def register(a, done):
    a(f's_load_dwordx8 s[48:55], s[0:1], {KA["Wq"]}')
    a(f's_load_dwordx4 s[56:59], s[0:1], {KA["dbg"]}')
    a('v_lshrrev_b32 v1, 6, v0')
    a('s_nop 0')
    a('v_readfirstlane_b32 s33, v1')
    a('v_and_b32 v0, 63, v0')
    a('s_mov_b32 s44, 0x40000')
    a('s_waitcnt lgkmcnt(0)')
    a('s_cmp_lg_u32 s33, 0')
    a('s_cbranch_scc1 R_wait_role')
    srd(a, 4, 58, CNT + 272*128, 1024)
    a('s_getreg_b32 s40, hwreg(HW_REG_XCC_ID)')
    a('s_and_b32 s40, s40, 7')
    a('s_mov_b64 exec, 1')
    a('s_lshl_b32 s3, s40, 7')
    a('v_mov_b32 v1, s3')
    a('v_mov_b32 v2, 1')
    a('buffer_atomic_add v2, v1, s[4:7], 0 offen sc0')
    a('s_waitcnt vmcnt(0)')
    a('v_readfirstlane_b32 s41, v2')
    a('s_mov_b64 exec, 0xff')
    a('v_lshlrev_b32 v1, 7, v0')
    a.label('R_poll')
    a('s_sub_u32 s44, s44, 1')
    a(f's_cbranch_scc1 {done}')
    a('buffer_load_dword v4, v1, s[4:7], 0 offen sc1')
    a('s_waitcnt vmcnt(0)')
    a('s_mov_b32 s3, 0')
    a('s_mov_b32 s45, 0')
    for i in range(8):
        a(f'v_readlane_b32 s8, v4, {i}')
        a(f's_cmp_gt_u32 s40, {i}')
        a('s_cselect_b32 s9, s8, 0')
        a('s_add_u32 s45, s45, s9')
        a('s_add_u32 s3, s3, s8')
    a('s_cmp_lt_u32 s3, 256')
    a('s_cbranch_scc1 R_poll')
    a('s_add_u32 s45, s45, s41')
    a('v_cmp_ne_u32 vcc, 32, v4')
    a('s_mov_b32 s42, 0')
    a('s_cmp_eq_u64 vcc, 0')
    if not os.environ.get('FORCE_SLOW'):
        a('s_cbranch_scc1 R_fast')
    else:
        a('s_mul_i32 s45, s45, 37')
        a('s_and_b32 s45, s45, 255')
    a('s_mov_b32 s42, 1')
    a('s_lshr_b32 s40, s45, 5')
    a('s_and_b32 s41, s45, 31')
    a.label('R_fast')
    a('s_mov_b64 exec, 1')
    a('v_mov_b32 v4, s40'); a('v_mov_b32 v5, s41'); a('v_mov_b32 v6, s42'); a('v_mov_b32 v7, 0')
    a('v_mov_b32 v1, 0')
    a('ds_write_b128 v1, v[4:7]')
    a('s_waitcnt lgkmcnt(0)')
    a('s_mov_b64 exec, -1')
    a.label('R_wait_role')
    a('s_barrier')
    a('v_mov_b32 v1, 0')
    a('ds_read_b128 v[4:7], v1')
    a('s_waitcnt lgkmcnt(0)')
    a('v_readfirstlane_b32 s40, v4')
    a('v_readfirstlane_b32 s41, v5')
    a('v_readfirstlane_b32 s42, v6')
    a('s_and_b32 s40, s40, 7')
    a('s_and_b32 s41, s41, 31')

def gen_k2(a):
    name = 'chain_kernel'
    kernel_begin(a, name)
    a('s_cmp_ge_u32 s2, 256')
    a('s_cbranch_scc1 K2_done')
    register(a, 'K2_done')
    a('s_cmp_ge_u32 s41, 16')
    a('s_cbranch_scc1 K2_done')
    chain_body(a, 'K2_done')
    a.label('K2_done')
    a('s_endpgm')
    return name, dict(vgpr=256, grid=256, block=512, lds=131072)
```

```python
class Asm:
    def __init__(self):
        self.lines = []
        self.uid = 0
    def __call__(self, s):
        for l in s.split('\n'):
            l = l.strip()
            if l:
                self.lines.append('    ' + l)
    def label(self, name):
        self.lines.append(name + ':')
    def newlabel(self, base='L'):
        self.uid += 1
        return f'{base}_{self.uid}'
    def comment(self, s):
        self.lines.append('    ; ' + s)
    def text(self):
        return '\n'.join(self.lines) + '\n'

def vr(b, n=1):
    return f'v{b}' if n == 1 else f'v[{b}:{b+n-1}]'
def ar(b, n=1):
    return f'a{b}' if n == 1 else f'a[{b}:{b+n-1}]'
def sr(b, n=1):
    return f's{b}' if n == 1 else f's[{b}:{b+n-1}]'

def R(b, n=1):
    if b >= 256:
        return ar(b-256, n)
    assert b + n <= 256
    return vr(b, n)

KA = dict(x=0, mem0=8, Wq=16, Wk=24, Wv=32, Wo=40, seg=48, Bx=56, w1=64, b1=72, w2=80, b2=88, out=96, dbg=104, ws=112)

XNF = 0x0
QF  = 0x0400000
KF  = 0x1400000
VF  = 0x2400000
HF  = 0x3400000
OF  = 0x3C00000
F0  = 0x4D00000
MEMSLOT = 81920
MEMB = F0 - MEMSLOT
CQK = F0 + 0x500000
CV  = F0 + 0xD00000
PART = F0 + 0x1100000
FILLSZ = 0x1B00000
WOF = 0x6800000
W2F = 0x6E00000

def srd(a, d, ptr_lo, off, size):
    if off:
        a(f's_add_u32 s{d}, s{ptr_lo}, 0x{off:x}')
        a(f's_addc_u32 s{d+1}, s{ptr_lo+1}, 0')
    else:
        a(f's_mov_b32 s{d}, s{ptr_lo}')
        a(f's_mov_b32 s{d+1}, s{ptr_lo+1}')
    a(f's_mov_b32 s{d+2}, 0x{size:x}')
    a(f's_mov_b32 s{d+3}, 0x20000')

def kernel_begin(a, name):
    a.lines.append('.text')
    a.lines.append(f'.globl {name}')
    a.lines.append('.p2align 8')
    a.lines.append(f'.type {name},@function')
    a.label(name)

def kernel_desc(a, name, vgpr, sgpr=102, accum=None):
    if accum is None:
        accum = min(256, (vgpr + 3)//4*4)
    a.lines.append('.section .rodata,"a"')
    a.lines.append('.p2align 6')
    a.lines.append(f'.amdhsa_kernel {name}')
    a.lines.append(f'  .amdhsa_next_free_vgpr {vgpr}')
    a.lines.append(f'  .amdhsa_next_free_sgpr {sgpr}')
    a.lines.append(f'  .amdhsa_accum_offset {accum}')
    a.lines.append('  .amdhsa_group_segment_fixed_size 0')
    a.lines.append('  .amdhsa_kernarg_size 120')
    a.lines.append('  .amdhsa_user_sgpr_count 2')
    a.lines.append('  .amdhsa_user_sgpr_kernarg_segment_ptr 1')
    a.lines.append('  .amdhsa_system_sgpr_workgroup_id_x 1')
    a.lines.append('  .amdhsa_float_denorm_mode_32 3')
    a.lines.append('.end_amdhsa_kernel')

CNT = 0x7200000
CNT_KV, CNT_Q, CNT_H, CNT_RL, CNT_O = 0, 128, 192, 200, 208
CNTSZ = 320*128

GF = 0x7400000
CNT_G = 288
```

```python
from fw import *
import os
import k1
from k1 import ACC, WF, TF, AW, AT, VW, VT, VL, VR, TMP, mainloop, prologue
from chain16 import chain_body, register, CEXP, maxops

KVN = 4
ASLP = int(os.environ.get('ASLP', '12'))
def flag_add(a, sidx):
    l = a.newlabel('FA')
    a('s_waitcnt vmcnt(0)')
    a('s_barrier')
    a('s_cmp_lg_u32 s33, 0')
    a(f's_cbranch_scc1 {l}')
    a('s_mov_b64 exec, 1')
    a(f's_lshl_b32 s3, s{sidx}, 7')
    a('v_mov_b32 v254, 0')
    a('v_mov_b32 v255, 1')
    a('buffer_atomic_add v255, v254, s[76:79], s3 offen')
    a('s_mov_b64 exec, -1')
    a.label(l)

def flag_wait(a, sidx, val, done, slp=16, wg=True):
    l = a.newlabel('FW'); l2 = a.newlabel('FK')
    if wg:
        a('s_cmp_lg_u32 s33, 0')
        a(f's_cbranch_scc1 {l2}')
    a(f's_lshl_b32 s3, s{sidx}, 7')
    a('v_mov_b32 v254, 0')
    a.label(l)
    a('buffer_load_dword v255, v254, s[76:79], s3 offen sc1')
    a('s_waitcnt vmcnt(0)')
    a('v_readfirstlane_b32 s75, v255')
    a(f's_cmp_ge_u32 s75, {val}')
    a(f's_cbranch_scc1 {l2}')
    a(f's_sleep {slp}')
    a('s_sub_u32 s44, s44, 1')
    a(f's_cbranch_scc0 {l}')
    a(f's_branch {done}')
    a.label(l2)
    if wg:
        a('s_barrier')

def dstamp2(a, slot, ptr):
    if int(os.environ.get('DIAG', '0')):
        a('s_memrealtime s[74:75]')
        a('s_waitcnt lgkmcnt(0)')
        srd(a, 76, ptr, 0x8800000, 65536)
        a('s_lshl_b32 s3, s2, 5')
        a(f'v_mov_b32 v254, {slot*4}')
        a('v_mov_b32 v255, s74')
        a('buffer_store_dword v255, v254, s[76:79], s3 offen')
        a('s_waitcnt vmcnt(0)')
        srd(a, 76, ptr, CNT, CNTSZ)

def kvwait(a, tag):
    l = f'C_kvok{tag}'
    if tag == 'i':
        dstamp2(a, 4, 58)
        srd(a, 76, 58, CNT, CNTSZ)
        a('s_lshl_b32 s74, s40, 4')
    else:
        a('s_add_u32 s75, s43, 1')
        a('s_and_b32 s3, s75, 3')
        a('s_cmp_lg_u32 s3, 0')
        a(f's_cbranch_scc1 {l}')
        a('s_cmp_ge_u32 s75, 64')
        a(f's_cbranch_scc1 {l}')
        a('s_lshl_b32 s74, s40, 4')
        a('s_lshr_b32 s3, s75, 2')
        a('s_add_u32 s74, s74, s3')
    flag_wait(a, 74, 4, 'M_done', 2, False)
    if tag == 'i': dstamp2(a, 5, 58)
    a.label(l)

def tile_setup2(a):
    a('s_lshr_b32 s38, s29, 4')
    a('s_cmp_eq_u32 s38, 0')
    a('s_cselect_b32 s12, s40, s42'); a('s_cselect_b32 s13, s41, s43')
    a('s_cmp_eq_u32 s38, 2')
    a('s_cselect_b32 s12, s80, s12'); a('s_cselect_b32 s13, s81, s13')
    a('s_cmp_eq_u32 s38, 3')
    a('s_cselect_b32 s12, s48, s12'); a('s_cselect_b32 s13, s49, s13')
    a('s_mov_b32 s30, 8192'); a('s_cmov_b32 s30, 3456')
    a(f's_mov_b32 s14, {640*8192}'); a(f's_cmov_b32 s14, {640*3456}')
    a('s_mov_b32 s15, 0x20000')
    a('s_and_b32 s39, s29, 15')
    a('s_lshl_b32 s46, s39, 9')
    a('s_lshl_b32 s37, s30, 5')
    a('s_mov_b32 s31, 0')
    a('s_mul_i32 s32, s28, 16*20*1024')
    a('s_add_u32 s36, s32, 20480')
    for j in range(2):
        a(f'v_mul_lo_u32 v{VW+j}, v{VR+j}, s30')
        a(f'v_add_u32 v{VW+j}, v{VW+j}, v{252+j}')
        a(f'v_add_u32 v{VW+j}, s46, v{VW+j}')

def worker(a, done):
    a('s_barrier')
    a('s_mov_b32 s70, s40')
    a('s_sub_u32 s71, s41, 16')
    a(f's_load_dwordx4 s[40:43], s[0:1], {KA["Wq"]}')
    a(f's_load_dwordx2 s[80:81], s[0:1], {KA["Wv"]}')
    a(f's_load_dwordx4 s[48:51], s[0:1], {KA["w1"]}')
    a(f's_load_dwordx2 s[6:7], s[0:1], {KA["ws"]}')
    a(f's_load_dwordx2 s[60:61], s[0:1], {KA["Wo"]}')
    a(f's_load_dwordx4 s[64:67], s[0:1], {KA["w2"]}')
    a(f's_load_dwordx2 s[68:69], s[0:1], {KA["x"]}')
    a(f's_load_dwordx2 s[82:83], s[0:1], {KA["out"]}')
    a('s_lshl_b32 s34, s33, 11')
    a('s_add_u32 s35, s34, 16384')
    a('v_mov_b32 v1, v0')
    a(f'v_lshlrev_b32 v{VL}, 4, v1')
    a('v_lshrrev_b32 v2, 5, v1')
    a('s_lshl_b32 s47, s33, 2')
    for j in range(2):
        a(f'v_add_u32 v{VR+j}, s47, v2')
        if j: a(f'v_add_u32 v{VR+j}, 2, v{VR+j}')
        a(f'v_and_b32 v4, 7, v{VR+j}')
        a('v_lshlrev_b32 v4, 1, v4')
        a('v_and_b32 v5, 31, v1')
        a('v_xor_b32 v4, v4, v5')
        a(f'v_lshlrev_b32 v{252+j}, 4, v4')
    a('s_mul_i32 s47, s33, 40960')
    a(f'v_add_u32 v{VT}, s47, v{VL}')
    a('s_lshr_b32 s52, s33, 1')
    a('s_and_b32 s53, s33, 1')
    a('s_lshl_b32 s47, s52, 12')
    a('s_add_u32 s47, s47, 16384')
    a(f'v_add_u32 v{AT}, s47, v{VL}')
    a(f'v_add_u32 v{AT+1}, 0x10000, v{AT}')
    a('v_lshrrev_b32 v2, 4, v1')
    a('v_bfe_u32 v3, v1, 2, 2')
    a('v_lshl_add_u32 v4, v2, 2, v3')
    a('v_and_b32 v5, 7, v4')
    a('v_lshlrev_b32 v4, 9, v4')
    a('v_and_b32 v6, 3, v1')
    a('v_lshl_add_u32 v4, v6, 3, v4')
    a('s_lshl_b32 s47, s53, 8')
    a('v_add_u32 v4, s47, v4')
    for c in range(8):
        a(f'v_xor_b32 v6, {c}, v5')
        a(f'v_lshl_add_u32 v{AW+c}, v6, 5, v4')
        a(f'v_add_u32 v{AW+8+c}, 0x10000, v{AW+c}')
    a('s_waitcnt lgkmcnt(0)')
    srd(a, 16, 6, XNF, 128*20*1024)
    srd(a, 76, 6, CNT, CNTSZ)
    a('s_mov_b32 s72, 0')
    a.label('W_task')
    a('s_cmp_ge_u32 s72, 4')
    a('s_cbranch_scc1 W_t23')
    a('s_lshr_b32 s28, s71, 2')
    a('s_lshl_b32 s3, s72, 2')
    a('s_add_u32 s28, s28, s3')
    a('s_bfe_u32 s3, s71, 0x10001')
    a('s_lshl_b32 s29, s3, 4')
    a('s_add_u32 s29, s29, 16')
    a('s_lshl_b32 s3, s70, 1'); a('s_add_u32 s29, s29, s3')
    a('s_and_b32 s3, s71, 1'); a('s_add_u32 s29, s29, s3')
    a('s_lshl_b32 s73, s70, 4'); a('s_add_u32 s73, s73, s28')
    tile_setup2(a)
    a('s_lshr_b32 s32, s32, 1')
    a('s_lshl_b32 s35, s33, 10'); a('s_add_u32 s35, s35, 16384')
    a('s_mul_i32 s47, s33, 20480')
    a(f'v_add_u32 v{VT}, s47, v{VL}')
    a('s_lshl_b32 s47, s52, 11'); a('s_add_u32 s47, s47, 16384')
    a(f'v_add_u32 v{AT}, s47, v{VL}')
    a(f'v_add_u32 v{AT+1}, 0x10000, v{AT}')
    a('s_cmp_lg_u32 s72, 0')
    a('s_cbranch_scc1 W_nopf')
    a(f'v_lshrrev_b32 v0, 9, v{VL}')
    a('v_lshlrev_b32 v0, 13, v0')
    a(f'v_and_b32 v1, 0x1ff, v{VL}')
    a('v_add_u32 v0, v0, v1')
    a('v_add_u32 v0, s46, v0')
    a('s_mul_i32 s3, s28, 160'); a('s_mul_i32 s47, s33, 20'); a('s_add_u32 s3, s3, s47'); a('s_lshl_b32 s3, s3, 13')
    for i in range(10):
        a(f'buffer_load_dwordx4 v[{4+4*i}:{7+4*i}], v0, s[12:15], s3 offen')
        a('s_add_u32 s3, s3, 16384')
    a.label('W_nopf')
    prologue(a, 2)
    a('s_cmp_eq_u32 s38, 2')
    a('s_cbranch_scc1 W_V')
    mainloop(a, False, 0, 2)
    srd(a, 20, 6, KF, 0x1000000)
    a('s_lshl_b32 s47, s28, 3')
    a('s_lshl_b32 s54, s52, 1')
    a('s_add_u32 s47, s47, s54')
    a('s_lshl_b32 s47, s47, 5')
    a('s_lshl_b32 s54, s39, 1')
    a('s_add_u32 s54, s54, s53')
    a('s_add_u32 s47, s47, s54')
    a('s_lshl_b32 s47, s47, 12')
    for i in range(2):
        for u in range(4):
            t = TMP + 4*((i*4+u) % 4)
            a0 = ACC + ((2*u)*4+i)*4
            a1 = ACC + ((2*u+1)*4+i)*4
            a(f'v_cvt_pk_bf16_f32 v{t}, v{a0}, v{a0+1}')
            a(f'v_cvt_pk_bf16_f32 v{t+1}, v{a0+2}, v{a0+3}')
            a(f'v_cvt_pk_bf16_f32 v{t+2}, v{a1}, v{a1+1}')
            a(f'v_cvt_pk_bf16_f32 v{t+3}, v{a1+2}, v{a1+3}')
            a(f'buffer_store_dwordx4 v[{t}:{t+3}], v{VL}, s[20:23], s47 offen offset:{u*1024} sc1')
        if i < 1:
            a('s_add_u32 s47, s47, 131072')
    a('s_branch W_next')
    a.label('W_t23')
    a('s_lshl_b32 s35, s33, 11'); a('s_add_u32 s35, s35, 16384')
    a('s_mul_i32 s47, s33, 40960')
    a(f'v_add_u32 v{VT}, s47, v{VL}')
    a('s_lshl_b32 s47, s52, 12'); a('s_add_u32 s47, s47, 16384')
    a(f'v_add_u32 v{AT}, s47, v{VL}')
    a(f'v_add_u32 v{AT+1}, 0x10000, v{AT}')
    a('s_cmp_eq_u32 s72, 5')
    a('s_cbranch_scc1 W_t3')
    a('s_lshr_b32 s28, s71, 1')
    a('s_lshl_b32 s29, s70, 1')
    a('s_and_b32 s3, s71, 1'); a('s_add_u32 s29, s29, s3')
    a('s_lshl_b32 s73, s70, 3'); a('s_add_u32 s73, s73, s28'); a(f's_add_u32 s73, s73, {CNT_Q}')
    a('s_branch W_go')
    a.label('W_t3')
    a('s_lshl_b32 s3, s70, 4'); a('s_add_u32 s58, s3, s71')
    a('s_cmp_ge_u32 s58, 56')
    a('s_cbranch_scc1 W_side')
    a('s_and_b32 s28, s58, 7')
    a('s_lshr_b32 s29, s58, 3'); a('s_add_u32 s29, s29, 48')
    a(f's_add_u32 s73, s28, {CNT_H}')
    a.label('W_go')
    tile_setup2(a)
    prologue(a)
    mainloop(a, False, 0)
    a('s_cmp_eq_u32 s38, 3')
    a('s_cbranch_scc1 W_F')
    srd(a, 20, 6, QF, 0x1000000)
    a('s_lshl_b32 s47, s28, 4')
    a('s_lshl_b32 s54, s52, 2')
    a('s_add_u32 s47, s47, s54')
    a('s_lshl_b32 s47, s47, 5')
    a('s_lshl_b32 s54, s39, 1')
    a('s_add_u32 s54, s54, s53')
    a('s_add_u32 s47, s47, s54')
    a('s_lshl_b32 s47, s47, 12')
    for i in range(4):
        for u in range(4):
            t = TMP + 4*((i*4+u) % 4)
            a0 = ACC + ((2*u)*4+i)*4
            a1 = ACC + ((2*u+1)*4+i)*4
            a(f'v_cvt_pk_bf16_f32 v{t}, v{a0}, v{a0+1}')
            a(f'v_cvt_pk_bf16_f32 v{t+1}, v{a0+2}, v{a0+3}')
            a(f'v_cvt_pk_bf16_f32 v{t+2}, v{a1}, v{a1+1}')
            a(f'v_cvt_pk_bf16_f32 v{t+3}, v{a1+2}, v{a1+3}')
            a(f'buffer_store_dwordx4 v[{t}:{t+3}], v{VL}, s[20:23], s47 offen offset:{u*1024} sc1')
        if i < 3:
            a('s_add_u32 s47, s47, 131072')
    a('s_branch W_next')
    a.label('W_F')
    srd(a, 20, 6, HF, 128*54*1024)
    srd(a, 24, 50, 0, 3456)
    a(f'v_lshrrev_b32 v251, 8, v{VL}')
    a('v_lshlrev_b32 v251, 3, v251')
    a('s_lshl_b32 s47, s53, 8')
    a('s_add_u32 s47, s47, s46')
    for c in range(8):
        a(f'buffer_load_dwordx2 v[{WF+2*c}:{WF+2*c+1}], v251, s[24:27], s47 offen offset:{32*c}')
    a('s_waitcnt vmcnt(0)')
    for c in range(8):
        for p in range(2):
            src = WF + 2*c + p
            a(f'v_lshlrev_b32 v{216+4*c+2*p}, 16, v{src}')
            a(f'v_and_b32 v{216+4*c+2*p+1}, 0xffff0000, v{src}')
    a('s_lshl_b32 s47, s28, 4')
    a('s_lshl_b32 s54, s52, 2')
    a('s_add_u32 s47, s47, s54')
    a('s_mul_i32 s47, s47, 54')
    a('s_lshl_b32 s54, s39, 3')
    a('s_lshl_b32 s55, s53, 2')
    a('s_add_u32 s54, s54, s55')
    a('s_add_u32 s47, s47, s54')
    a('s_lshl_b32 s47, s47, 10')
    for u in range(4):
        if u == 2:
            a('s_cmp_ge_u32 s54, 52')
            a('s_cbranch_scc1 W_next')
        a('s_mov_b32 s55, s47')
        for i in range(4):
            t = TMP + 4*(i % 4)
            for half in range(2):
                c = 2*u + half
                ac = ACC + (c*4+i)*4
                for p in range(2):
                    x0, x1 = 248, 249
                    a(f'v_cvt_pk_bf16_f32 v250, v{ac+2*p}, v{ac+2*p+1}')
                    a(f'v_lshlrev_b32 v{x0}, 16, v250')
                    a(f'v_and_b32 v{x1}, 0xffff0000, v250')
                    a(f'v_add_f32 v{x0}, v{x0}, v{216+4*c+2*p}')
                    a(f'v_add_f32 v{x1}, v{x1}, v{216+4*c+2*p+1}')
                    a(f'v_cvt_pk_bf16_f32 v250, v{x0}, v{x1}')
                    a(f'v_lshlrev_b32 v{x0}, 16, v250')
                    a(f'v_and_b32 v{x1}, 0xffff0000, v250')
                    a(f'v_max_f32 v{x0}, 0, v{x0}')
                    a(f'v_max_f32 v{x1}, 0, v{x1}')
                    a(f'v_mul_f32 v{x0}, v{x0}, v{x0}')
                    a(f'v_mul_f32 v{x1}, v{x1}, v{x1}')
                    a(f'v_cvt_pk_bf16_f32 v{t+2*half+p}, v{x0}, v{x1}')
            a(f'buffer_store_dwordx4 v[{t}:{t+3}], v{VL}, s[20:23], s55 offen offset:{u*1024} sc1')
            if i < 3:
                a(f's_add_u32 s55, s55, {54*1024}')
    a('s_branch W_next')
    a.label('W_V')
    mainloop(a, True, 0, 2)
    srd(a, 20, 6, VF, 0x1000000)
    a('s_lshl_b32 s47, s28, 2')
    a('s_add_u32 s47, s47, s52')
    a('s_lshl_b32 s47, s47, 5')
    a('s_lshl_b32 s54, s39, 1')
    a('s_add_u32 s54, s54, s53')
    a('s_add_u32 s47, s47, s54')
    a('s_lshl_b32 s47, s47, 13')
    for c in range(8):
        t = TMP + 4*(c % 4)
        a0 = ACC + (c*4)*4
        a1 = ACC + (c*4+1)*4
        a(f'v_cvt_pk_bf16_f32 v{t}, v{a0}, v{a0+1}')
        a(f'v_cvt_pk_bf16_f32 v{t+1}, v{a0+2}, v{a0+3}')
        a(f'v_cvt_pk_bf16_f32 v{t+2}, v{a1}, v{a1+1}')
        a(f'v_cvt_pk_bf16_f32 v{t+3}, v{a1+2}, v{a1+3}')
        a(f'buffer_store_dwordx4 v[{t}:{t+3}], v{VL}, s[20:23], s47 offen offset:{(c%4)*1024} sc1')
        if c == 3:
            a('s_add_u32 s47, s47, 4096')
    a.label('W_next')
    a('s_cmp_lg_u32 s72, 0')
    a('s_cbranch_scc1 W_ns1')
    dstamp2(a, 4, 6)
    a.label('W_ns1')
    flag_add(a, 73)
    a('s_cmp_lg_u32 s72, 0')
    a('s_cbranch_scc1 W_ns2')
    dstamp2(a, 5, 6)
    a.label('W_ns2')
    a('s_cmp_lg_u32 s72, 3')
    a('s_cbranch_scc1 W_ns3')
    dstamp2(a, 6, 6)
    a.label('W_ns3')
    a('s_add_u32 s72, s72, 1')
    a('s_cmp_lt_u32 s72, 6')
    a('s_cbranch_scc1 W_task')
    a('s_branch W_attn')
    a.label('W_side')
    a('s_sub_u32 s58, s58, 56')
    a('s_lshl_b32 s58, s58, 3')
    a('s_add_u32 s58, s58, s33')
    a(f'v_lshrrev_b32 v1, 4, v{VL}')
    a('s_mov_b32 s37, 0x1999999a')
    for j in range(5):
        a(f'v_add_u32 v2, {64*j}, v1')
        a('v_mul_hi_u32 v3, v2, s37')
        a('v_mul_u32_u24 v4, 10, v3')
        a('v_sub_u32 v4, v2, v4')
        a('v_mul_u32_u24 v3, 1280, v3')
        a(f'v_lshl_add_u32 v{8+j}, v4, 4, v3')
    a('s_mul_i32 s34, s33, 5120')
    a('v_lshrrev_b32 v2, 2, v1')
    a('v_mul_u32_u24 v2, 160, v2')
    a('v_and_b32 v3, 3, v1')
    a('v_lshl_add_u32 v2, v3, 3, v2')
    a('v_add_u32 v13, s34, v2')
    a(f'v_add_u32 v14, 4096, v{VL}')
    srd(a, 24, 6, WOF, 0xA00000)
    a.label('W_rl')
    a('s_and_b32 s3, s58, 7')
    a('s_lshr_b32 s47, s58, 3')
    a('s_cmp_lt_u32 s47, 128')
    a('s_cselect_b32 s8, s60, s64'); a('s_cselect_b32 s9, s61, s65')
    a(f's_mov_b32 s10, {1728*1280}'); a(f's_cmov_b32 s10, {4096*1280}')
    a('s_mov_b32 s11, 0x20000')
    a('s_cselect_b32 s54, 0, 128')
    a('s_mov_b32 s55, 54'); a('s_cmov_b32 s55, 128')
    a(f's_mov_b32 s56, {W2F - WOF}'); a('s_cmov_b32 s56, 0')
    a('s_sub_u32 s54, s47, s54')
    a('s_mul_i32 s55, s55, s3')
    a('s_add_u32 s55, s55, s54')
    a('s_mul_i32 s55, s55, 5120')
    a('s_add_u32 s55, s55, s56')
    a('s_mul_i32 s54, s54, 40960')
    a('s_mul_i32 s3, s3, 160')
    a('s_add_u32 s54, s54, s3')
    for j in range(5):
        a(f's_add_u32 m0, s34, {j*1024}')
        a('s_nop 0')
        a(f'buffer_load_dwordx4 v{8+j}, s[8:11], s54 offen lds')
    a('s_waitcnt vmcnt(0)')
    for c in range(5):
        a(f'ds_read_b64_tr_b16 v[{16+4*c}:{17+4*c}], v13 offset:{32*c}')
        a(f'ds_read_b64_tr_b16 v[{18+4*c}:{19+4*c}], v13 offset:{32*c + 2560}')
    a('s_waitcnt lgkmcnt(0)')
    for c in range(5):
        a(f'buffer_store_dwordx4 v[{16+4*c}:{19+4*c}], v{VL if c < 4 else 14}, s[24:27], s55 offen offset:{(c%4)*1024} sc1')
    a('s_add_u32 s58, s58, 576')
    a('s_cmp_lt_u32 s58, 1456')
    a('s_cbranch_scc1 W_rl')
    a(f's_mov_b32 s73, {CNT_RL}')
    flag_add(a, 73)
    a.label('W_attn')
    dstamp2(a, 7, 6)
    post_part(a, done)

def post_part(a, done):
    VL = 250
    a(f'v_mov_b32 v{VL}, v{k1.VL}')
    LN, V20, V4K, VMO, BI, CB = 251, 252, 253, 249, 240, 244
    a(f'v_lshrrev_b32 v{LN}, 4, v{VL}')
    a(f'v_add_u32 v{V4K}, 4096, v{VL}')
    a(f'v_and_b32 v{VMO}, 31, v{LN}')
    a(f'v_lshlrev_b32 v{VMO}, 4, v{VMO}')
    a('v_mov_b32 v0, 0xf149f2ca')
    a(f'v_cmp_gt_u32 vcc, 32, v{LN}')
    a('s_nop 1')
    for r in range(4):
        a(f'v_cndmask_b32 v{BI+r}, 0, v0, vcc')
    a(f'v_lshrrev_b32 v1, 4, v{LN}')
    a('v_lshlrev_b32 v1, 2, v1')
    a(f'v_and_b32 v2, 15, v{LN}')
    for r in range(4):
        a(f'v_add_u32 v{CB+r}, {r}, v1')
        a(f'v_cmp_gt_u32 vcc, v{CB+r}, v2')
        a('s_nop 1')
        a(f'v_cndmask_b32 v{CB+r}, 0, v0, vcc')
    a(f's_mov_b32 s74, {CNT_RL}')
    flag_wait(a, 74, 72, done)
    AG, FR, VTk = 0, 80, 232
    a('s_lshr_b32 s52, s33, 2')
    a('s_and_b32 s53, s33, 3')
    a('s_lshl_b32 s36, s71, 1'); a('s_add_u32 s36, s36, s52')
    srd(a, 12, 6, W2F, 8*54*5120)
    srd(a, 20, 6, HF, 128*54*1024)
    a('s_lshr_b32 s74, s71, 1'); a(f's_add_u32 s74, s74, {CNT_H}')
    flag_wait(a, 74, 7, done)
    for i in range(4):
        a(f'v_add_u32 v{VTk+i}, {i*54*1024}, v{VL}')
    a('s_mul_i32 s3, s53, 13')
    a('s_min_u32 s43, s53, 2')
    a('s_add_u32 s3, s3, s43')
    a('s_mul_i32 s40, s36, 4*54*1024')
    a('s_lshl_b32 s43, s3, 10')
    a('s_add_u32 s40, s40, s43')
    a('s_mul_i32 s41, s70, 54')
    a('s_add_u32 s41, s41, s3')
    a('s_mul_i32 s41, s41, 5120')
    a('s_cmp_lt_u32 s53, 2')
    a('s_cselect_b32 s42, 14, 13')
    NB = 4
    def ld(b):
        base = FR + 36*b
        for c in range(5):
            a(f'buffer_load_dwordx4 v[{base+16+4*c}:{base+19+4*c}], v{VL if c < 4 else V4K}, s[12:15], s41 offen offset:{(c%4)*1024} sc1')
        for i in range(4):
            a(f'buffer_load_dwordx4 v[{base+4*i}:{base+4*i+3}], v{VTk+i}, s[20:23], s40 offen sc1')
        a('s_add_u32 s41, s41, 5120')
        a('s_add_u32 s40, s40, 1024')
    for b in range(NB-1): ld(b)
    for r in range(80):
        a(f'v_mov_b32 v{AG+r}, 0')
    a('s_mov_b32 s45, 0')
    a.label('P_gl')
    for b in range(NB):
        ld((b+NB-1) % NB)
        a(f's_waitcnt vmcnt({9*(NB-1)})')
        base = FR + 36*b
        for c in range(5):
            for i in range(4):
                ac = AG + (i*5+c)*4
                a(f'v_mfma_f32_16x16x32_bf16 v[{ac}:{ac+3}], v[{base+16+4*c}:{base+19+4*c}], v[{base+4*i}:{base+4*i+3}], v[{ac}:{ac+3}]')
        a('s_add_u32 s45, s45, 1')
        a('s_cmp_ge_u32 s45, s42')
        a('s_cbranch_scc1 P_ge')
    a('s_branch P_gl')
    a.label('P_ge')
    a('s_waitcnt vmcnt(0)')
    a('s_nop 7')
    OWN = 160
    for i in range(4):
        a(f's_cmp_eq_u32 s53, {i}')
        a(f's_cbranch_scc1 P_sk{i}')
        a(f's_cmp_gt_u32 s53, {i}')
        a('s_cselect_b32 s3, 1, 0')
        a('s_sub_u32 s3, s53, s3')
        a(f's_add_u32 s3, s3, {3*i}')
        a('s_mul_i32 s3, s3, 5120')
        a('s_mul_i32 s43, s52, 61440')
        a('s_add_u32 s3, s3, s43')
        a(f'v_add_u32 v237, s3, v{VL}')
        for c in range(5):
            ac = AG + (i*5+c)*4
            a(f'ds_write_b128 v237, v[{ac}:{ac+3}] offset:{c*1024}')
        a(f's_branch P_sn{i}')
        a.label(f'P_sk{i}')
        for r in range(20):
            a(f'v_mov_b32 v{OWN+r}, v{AG+i*20+r}')
        a.label(f'P_sn{i}')
    a('s_waitcnt lgkmcnt(0)')
    a('s_barrier')
    a('s_mul_i32 s3, s53, 15360')
    a('s_mul_i32 s43, s52, 61440')
    a('s_add_u32 s3, s3, s43')
    a(f'v_add_u32 v237, s3, v{VL}')
    for f_ in range(15):
        a(f'ds_read_b128 v[{4*f_}:{4*f_+3}], v237 offset:{f_*1024}')
    srd(a, 8, 66, 0, 1280)
    srd(a, 28, 6, GF, 128*40*512)
    a(f'v_lshrrev_b32 v65, 4, v{LN}')
    a('v_lshlrev_b32 v65, 3, v65')
    a('s_mul_i32 s35, s70, 160')
    for c in range(5):
        a(f'buffer_load_dwordx2 v[{70+2*c}:{71+2*c}], v65, s[8:11], s35 offen offset:{32*c}')
    a('s_waitcnt lgkmcnt(0)')
    for jj in range(3):
        for r in range(20):
            a(f'v_add_f32 v{OWN+r}, v{OWN+r}, v{jj*20+r}')
    a('s_waitcnt vmcnt(0)')
    a('s_lshl_b32 s3, s36, 2'); a('s_add_u32 s3, s3, s53')
    a('s_mul_i32 s3, s3, 40'); a('s_mul_i32 s35, s70, 5'); a('s_add_u32 s3, s3, s35'); a('s_lshl_b32 s3, s3, 9')
    a(f'v_lshlrev_b32 v66, 3, v{LN}')
    x0, x1, y0, y1, t = 0, 1, 2, 3, 4
    for c in range(5):
        for p in range(2):
            G0 = OWN+4*c+2*p
            a(f'v_cvt_pk_bf16_f32 v{t}, v{G0}, v{G0+1}')
            a(f'v_lshlrev_b32 v{x0}, 16, v{t}')
            a(f'v_and_b32 v{x1}, 0xffff0000, v{t}')
            a(f'v_lshlrev_b32 v{y0}, 16, v{70+2*c+p}')
            a(f'v_and_b32 v{y1}, 0xffff0000, v{70+2*c+p}')
            a(f'v_add_f32 v{x0}, v{x0}, v{y0}')
            a(f'v_add_f32 v{x1}, v{x1}, v{y1}')
            a(f'v_cvt_pk_bf16_f32 v{t}, v{x0}, v{x1}')
            a(f'v_lshlrev_b32 v{x0}, 16, v{t}')
            a(f'v_and_b32 v{x1}, 0xffff0000, v{t}')
            a(f'v_mul_f32 v{y0}, 0xbfb8aa3b, v{x0}')
            a(f'v_mul_f32 v{y1}, 0xbfb8aa3b, v{x1}')
            a(f'v_exp_f32 v{y0}, v{y0}')
            a(f'v_exp_f32 v{y1}, v{y1}')
            a('s_nop 0')
            a(f'v_add_f32 v{y0}, 1.0, v{y0}')
            a(f'v_add_f32 v{y1}, 1.0, v{y1}')
            a(f'v_rcp_f32 v{y0}, v{y0}')
            a(f'v_rcp_f32 v{y1}, v{y1}')
            a('s_nop 0')
            a(f'v_mul_f32 v{x0}, v{x0}, v{y0}')
            a(f'v_mul_f32 v{x1}, v{x1}, v{y1}')
            a(f'v_cvt_pk_bf16_f32 v{8+2*c+p}, v{x0}, v{x1}')
        a(f'buffer_store_dwordx2 v[{8+2*c}:{9+2*c}], v66, s[28:31], s3 offen offset:{512*c} sc1')
    a(f's_add_u32 s73, s71, {CNT_G}')
    flag_add(a, 73)
    a('s_sub_u32 s72, s71, 14')
    a('s_cmp_ge_u32 s71, 14')
    a('s_cbranch_scc1 P_loopA')
    a('s_mul_i32 s58, s70, 14'); a('s_add_u32 s58, s58, s71')
    a('s_cmp_ge_u32 s58, 80')
    a(f's_cbranch_scc1 {done}')
    a('s_mov_b32 s72, 0')
    a('s_cmp_ge_u32 s58, 40'); a('s_addc_u32 s72, s72, 0')
    a('s_mul_i32 s3, s72, 40'); a('s_sub_u32 s58, s58, s3')
    srd(a, 8, 6, WOF, 8*128*5120)
    a('s_mul_hi_u32 s3, s58, 0x33333334')
    a('s_mul_i32 s35, s3, 5'); a('s_sub_u32 s35, s58, s35')
    a('s_lshl_b32 s3, s3, 7'); a('s_lshl_b32 s34, s33, 4'); a('s_add_u32 s3, s3, s34')
    a('s_mul_i32 s3, s3, 5120'); a('s_lshl_b32 s35, s35, 10'); a('s_add_u32 s3, s3, s35')
    a('s_lshl_b32 s34, s33, 14')
    for k_ in range(16):
        a(f's_add_u32 m0, s34, {k_*1024}')
        a('s_nop 0')
        a(f'buffer_load_dwordx4 v{VL}, s[8:11], s3 offen sc1 lds')
        a('s_add_u32 s3, s3, 5120')
    a('s_waitcnt vmcnt(0)')
    a('s_branch P_loopS')
    a.label('P_loopA')
    QQ, KK, QM, VX, VM, S, P, O = 0, 16, 48, 64, 96, 112, 124, 132
    srd(a, 8, 6, QF, 0x1000000)
    srd(a, 12, 6, KF, 0x1000000)
    srd(a, 16, 6, VF, 0x1000000)
    srd(a, 20, 6, CQK, 64*32*4096)
    srd(a, 24, 6, CV, 64*32*2048)
    srd(a, 28, 6, OF, 0x1000000)
    a(f's_mov_b32 s41, 0x{CEXP:x}')
    a(f'v_add_u32 v{V20}, 0x20000, v{VL}')
    for r in range(16):
        a(f'v_mov_b32 v{VM+r}, 0')
    a('s_lshl_b32 s74, s70, 4'); a('s_lshr_b32 s3, s72, 2'); a('s_add_u32 s74, s74, s3')
    flag_wait(a, 74, KVN, done)
    a('s_lshl_b32 s74, s70, 3'); a('s_lshr_b32 s3, s72, 3'); a('s_add_u32 s74, s74, s3')
    a(f's_add_u32 s74, s74, {CNT_Q}')
    flag_wait(a, 74, 2, done)
    a('s_lshl_b32 s35, s70, 2'); a('s_and_b32 s3, s33, 3'); a('s_add_u32 s35, s35, s3')
    a('s_lshl_b32 s3, s72, 5'); a('s_add_u32 s3, s3, s35')
    a('s_lshl_b32 s36, s72, 18')
    a('s_lshl_b32 s37, s35, 12')
    a('s_add_u32 s36, s36, s37')
    a('s_lshr_b32 s52, s33, 2')
    a('s_lshl_b32 s37, s52, 17')
    a('s_add_u32 s37, s37, s36')
    a('s_lshl_b32 s38, s3, 13')
    a('s_lshl_b32 s39, s3, 12')
    a('s_lshl_b32 s40, s3, 11')
    for u in range(4):
        a(f'buffer_load_dwordx4 v[{QQ+4*u}:{QQ+4*u+3}], v{VL}, s[8:11], s37 offen offset:{u*1024} sc1')
    for t in range(2):
        for u in range(4):
            r = KK + (t*4+u)*4
            a(f'buffer_load_dwordx4 v[{r}:{r+3}], v{VL if t == 0 else V20}, s[12:15], s36 offen offset:{u*1024} sc1')
    for ct in range(8):
        a(f'buffer_load_dwordx4 v[{VX+4*ct}:{VX+4*ct+3}], v{VL if ct < 4 else V4K}, s[16:19], s38 offen offset:{(ct%4)*1024} sc1')
    m_, t_, l_ = 164, 165, 166
    a('s_cmp_lg_u32 s33, 0')
    a('s_cbranch_scc1 P_lp_done')
    a('s_mov_b64 exec, 1')
    a.label('P_lp')
    a(f'buffer_load_dword v{m_}, v{VL}, s[24:27], s40 offen sc1')
    a('s_waitcnt vmcnt(0)')
    a(f'v_cmp_eq_u32 vcc, -1, v{m_}')
    a('s_cbranch_vccz P_lp_ok')
    a(f's_sleep {ASLP}')
    a('s_sub_u32 s44, s44, 1')
    a('s_cbranch_scc0 P_lp')
    a(f's_branch {done}')
    a.label('P_lp_ok')
    a('s_mov_b64 exec, -1')
    a.label('P_lp_done')
    a('s_barrier')
    a.label('P_at_poll')
    for u in range(4):
        a(f'buffer_load_dwordx4 v[{QM+4*u}:{QM+4*u+3}], v{VL}, s[20:23], s39 offen offset:{u*1024} sc1')
    a('s_mov_b32 exec_lo, 0')
    for u in range(4):
        a(f'buffer_load_dwordx4 v[{VM+4*u}:{VM+4*u+3}], v{VMO}, s[24:27], s40 offen offset:{u*512} sc1')
    a('s_mov_b32 exec_lo, -1')
    a('s_waitcnt vmcnt(0)')
    for o in maxops(list(range(QM, QM+16)) + list(range(VM, VM+16)), m_): a(o)
    a('s_cbranch_vccz P_at_ok')
    a('s_sleep 2')
    a('s_sub_u32 s44, s44, 1')
    a('s_cbranch_scc0 P_at_poll')
    a(f's_branch {done}')
    a.label('P_at_ok')
    a('s_cmp_eq_u32 s52, 1')
    a('s_cbranch_scc1 P_q1')
    for qt in range(2):
        if qt == 1: a.label('P_q1')
        tiles = [0, 2] if qt == 0 else [0, 1, 2]
        for u in range(4):
            for t3 in tiles:
                A = (KK + (t3*4+u)*4) if t3 < 2 else QM + 4*u
                acc = S + 4*t3
                if u == 0:
                    C = f'v[{BI}:{BI+3}]' if t3 == 2 else (f'v[{CB}:{CB+3}]' if t3 == qt else '0')
                else:
                    C = f'v[{acc}:{acc+3}]'
                a(f'v_mfma_f32_16x16x32_bf16 v[{acc}:{acc+3}], v[{A}:{A+3}], v[{QQ+4*u}:{QQ+4*u+3}], {C}')
        a('s_nop 7')
        regs = [S+4*t3+r for t3 in tiles for r in range(4)]
        a(f'v_max3_f32 v{m_}, v{regs[0]}, v{regs[1]}, v{regs[2]}')
        i = 3
        while i + 1 < len(regs):
            a(f'v_max3_f32 v{m_}, v{m_}, v{regs[i]}, v{regs[i+1]}'); i += 2
        a(f'v_max_f32 v{m_}, v{m_}, v{regs[i]}')
        for sw in ('32', '16'):
            a(f'v_mov_b32 v{t_}, v{m_}')
            a('s_nop 1')
            a(f'v_permlane{sw}_swap_b32 v{m_}, v{t_}')
            a(f'v_max_f32 v{m_}, v{m_}, v{t_}')
        a(f'v_mul_f32 v{m_}, s41, v{m_}')
        for r in regs:
            a(f'v_fma_f32 v{r}, v{r}, s41, -v{m_}')
        for r in regs:
            a(f'v_exp_f32 v{r}, v{r}')
        for t3 in range(3):
            if t3 in tiles:
                a(f'v_cvt_pk_bf16_f32 v{P+2*t3}, v{S+4*t3}, v{S+4*t3+1}')
                a(f'v_cvt_pk_bf16_f32 v{P+2*t3+1}, v{S+4*t3+2}, v{S+4*t3+3}')
            else:
                a(f'v_mov_b32 v{P+2*t3}, 0')
                a(f'v_mov_b32 v{P+2*t3+1}, 0')
        a(f'v_add_f32 v{l_}, v{regs[0]}, v{regs[1]}')
        for r in regs[2:]:
            a(f'v_add_f32 v{l_}, v{l_}, v{r}')
        if qt == 0: a('s_branch P_pv')
    a.label('P_pv')
    for ct in range(8):
        a(f'v_mfma_f32_16x16x32_bf16 v[{O+4*ct}:{O+4*ct+3}], v[{VX+4*ct}:{VX+4*ct+3}], v[{P}:{P+3}], 0')
    for ct in range(8):
        a(f'v_mfma_f32_16x16x16_bf16 v[{O+4*ct}:{O+4*ct+3}], v[{VM+2*ct}:{VM+2*ct+1}], v[{P+4}:{P+5}], v[{O+4*ct}:{O+4*ct+3}]')
    for sw in ('32', '16'):
        a(f'v_mov_b32 v{t_}, v{l_}')
        a('s_nop 1')
        a(f'v_permlane{sw}_swap_b32 v{l_}, v{t_}')
        a(f'v_add_f32 v{l_}, v{l_}, v{t_}')
    a(f'v_rcp_f32 v{l_}, v{l_}')
    a('s_nop 0')
    for u2 in range(4):
        for r in range(8):
            a(f'v_mul_f32 v{O+8*u2+r}, v{O+8*u2+r}, v{l_}')
        for p in range(4):
            a(f'v_cvt_pk_bf16_f32 v{O+8*u2+p}, v{O+8*u2+2*p}, v{O+8*u2+2*p+1}')
        a(f'buffer_store_dwordx4 v[{O+8*u2}:{O+8*u2+3}], v{VL}, s[28:31], s37 offen offset:{u2*1024} sc1')
    a(f's_add_u32 s73, s72, {CNT_O}')
    flag_add(a, 73)
    a('s_add_u32 s72, s72, 2')
    a('s_cmp_lt_u32 s72, 64')
    a('s_cbranch_scc1 P_loopA')
    a(f's_branch {done}')
    a.label('P_loopS')
    srd(a, 16, 6, OF, 0x1000000)
    a('s_lshr_b32 s74, s72, 2'); a(f's_add_u32 s74, s74, {CNT_G}')
    flag_wait(a, 74, 8, done)
    a(f's_add_u32 s74, s72, {CNT_O}')
    flag_wait(a, 74, 8, done, 4)
    a('s_lshl_b32 s40, s72, 18')
    a('s_lshl_b32 s3, s33, 14')
    a('s_add_u32 s40, s40, s3')
    a(f'v_add_u32 v{V20}, 0x20000, v{VL}')
    a('s_lshl_b32 s3, s33, 14')
    a(f'v_add_u32 v200, s3, v{VL}')
    for k_ in range(16):
        for i in range(2):
            r = (k_*2+i)*4
            a(f'buffer_load_dwordx4 v[{r}:{r+3}], v{VL if i == 0 else V20}, s[16:19], s40 offen offset:{(k_%4)*1024} sc1')
        if k_ % 4 == 3: a('s_add_u32 s40, s40, 4096')
    for k_ in range(16):
        a(f'ds_read_b128 v[{128+4*k_}:{131+4*k_}], v200 offset:{k_*1024}')
    srd(a, 24, 68, 0, 2048*1280)
    srd(a, 28, 82, 0, 2048*1280)
    srd(a, 36, 6, GF, 128*40*512)
    a('s_waitcnt lgkmcnt(0)')
    for k_ in range(16):
        a(f's_waitcnt vmcnt({2*(15-k_)})')
        for i in range(2):
            r = (k_*2+i)*4
            C = '0' if k_ == 0 else f'v[{192+4*i}:{195+4*i}]'
            a(f'v_mfma_f32_16x16x32_bf16 v[{192+4*i}:{195+4*i}], v[{128+4*k_}:{131+4*k_}], v[{r}:{r+3}], {C}')
    a('s_lshl_b32 s3, s33, 10'); a('s_add_u32 s3, s3, 131072')
    a(f'v_add_u32 v201, s3, v{VL}')
    a('s_nop 4')
    a('s_barrier')
    a('ds_write_b128 v201, v[192:195]')
    a('ds_write_b128 v201, v[196:199] offset:8192')
    a('s_waitcnt lgkmcnt(0)')
    a('s_barrier')
    a('s_cmp_ge_u32 s33, 2')
    a('s_cbranch_scc1 P_next')
    a('s_lshl_b32 s3, s33, 13'); a('s_add_u32 s3, s3, 131072')
    a(f'v_add_u32 v201, s3, v{VL}')
    for w in range(8):
        a(f'ds_read_b128 v[{16+4*w}:{19+4*w}], v201 offset:{w*1024}')
    a(f'v_and_b32 v4, 15, v{LN}')
    a(f'v_lshrrev_b32 v5, 4, v{LN}')
    a('v_lshlrev_b32 v5, 3, v5')
    a('v_mul_u32_u24 v4, 1280, v4')
    a('v_add_u32 v4, v4, v5')
    a(f'v_lshlrev_b32 v6, 3, v{LN}')
    a('s_lshl_b32 s3, s72, 1'); a('s_add_u32 s3, s3, s33')
    a('s_mul_i32 s35, s3, 40'); a('s_add_u32 s35, s35, s58'); a('s_lshl_b32 s35, s35, 9')
    a('s_mul_i32 s3, s3, 20480'); a('s_lshl_b32 s34, s58, 5'); a('s_add_u32 s3, s3, s34')
    a('buffer_load_dwordx2 v[8:9], v4, s[24:27], s3 offen')
    a('buffer_load_dwordx2 v[10:11], v6, s[36:39], s35 offen sc1')
    a('s_waitcnt lgkmcnt(0)')
    for r in range(4):
        a(f'v_add_f32 v{12+r}, v{16+r}, v{20+r}')
        for w in range(2, 8):
            a(f'v_add_f32 v{12+r}, v{12+r}, v{16+4*w+r}')
    a('s_waitcnt vmcnt(0)')
    x0, x1, y0, y1, t = 16, 17, 18, 19, 20
    for p in range(2):
        a(f'v_lshlrev_b32 v{x0}, 16, v{10+p}')
        a(f'v_and_b32 v{x1}, 0xffff0000, v{10+p}')
        a(f'v_cvt_pk_bf16_f32 v{t}, v{12+2*p}, v{13+2*p}')
        a(f'v_lshlrev_b32 v{y0}, 16, v{t}')
        a(f'v_and_b32 v{y1}, 0xffff0000, v{t}')
        a(f'v_mul_f32 v{x0}, v{x0}, v{y0}')
        a(f'v_mul_f32 v{x1}, v{x1}, v{y1}')
        a(f'v_cvt_pk_bf16_f32 v{t}, v{x0}, v{x1}')
        a(f'v_lshlrev_b32 v{x0}, 16, v{t}')
        a(f'v_and_b32 v{x1}, 0xffff0000, v{t}')
        a(f'v_lshlrev_b32 v{y0}, 16, v{8+p}')
        a(f'v_and_b32 v{y1}, 0xffff0000, v{8+p}')
        a(f'v_add_f32 v{x0}, v{x0}, v{y0}')
        a(f'v_add_f32 v{x1}, v{x1}, v{y1}')
        a(f'v_cvt_pk_bf16_f32 v{24+p}, v{x0}, v{x1}')
    a('buffer_store_dwordx2 v[24:25], v4, s[28:31], s3 offen')
    a.label('P_next')
    a('s_add_u32 s72, s72, 2')
    a('s_cmp_lt_u32 s72, 64')
    a('s_cbranch_scc1 P_loopS')

def gen_mega(a):
    name = 'mega_kernel'
    kernel_begin(a, name)
    a('s_cmp_ge_u32 s2, 256')
    a('s_cbranch_scc1 M_done0')
    DG = int(os.environ.get('DIAG', '0'))
    if DG:
        a('s_memrealtime s[84:85]')
    register(a, 'M_done0')
    def dstamp(slot, ptr):
        if DG:
            a('s_memrealtime s[86:87]')
            a('s_waitcnt lgkmcnt(0)')
            srd(a, 88, ptr, 0x8800000, 65536)
            a('s_lshl_b32 s3, s2, 5')
            a(f'v_mov_b32 v254, {slot*8}')
            a('v_mov_b32 v252, s84'); a('v_mov_b32 v253, s86')
            a('buffer_store_dwordx2 v[252:253], v254, s[88:91], s3 offen')
    dstamp(0, 58)
    a('s_cmp_ge_u32 s41, 16')
    a('s_cbranch_scc1 M_worker')
    chain_body(a, 'M_done', kvwait)
    a.label('M_done0')
    a.label('M_done')
    a('s_endpgm')
    a.label('M_worker')
    worker(a, 'M_done2')
    dstamp(1, 6)
    a.label('M_done2')
    a('s_endpgm')
    return name, dict(vgpr=256, grid=256, block=512, lds=147456)
```

```python
from fw import *
import struct, os
def f2u(x): return struct.unpack('<I', struct.pack('<f', x))[0]
CEXP = f2u((128 ** -0.5) * 1.4426950408889634)
DIAG = int(os.environ.get('DIAG', '0'))
DBGT = 0x8000000
PACE = int(os.environ.get('PACE', '0'))
DPOS = int(os.environ.get('DPOS', '0'))
DSLP = int(os.environ.get('DSLP', '8'))
SLOT = 5120
DUMP = 15360
KVB = 16384
def stamp(a, i):
    if DIAG: a(f's_memrealtime s[{64+2*i}:{65+2*i}]')
def flush(a, adj=0):
    if DIAG:
        a('s_waitcnt lgkmcnt(0)')
        a('s_mov_b64 s[90:91], exec')
        a('s_mov_b64 exec, 1')
        a('s_lshl_b32 s88, s40, 5'); a('s_add_u32 s88, s88, s41'); a('s_lshl_b32 s88, s88, 3'); a('s_add_u32 s88, s88, s33')
        a('s_lshl_b32 s88, s88, 6'); a('s_add_u32 s88, s88, s43'); a(f's_sub_u32 s88, s88, {adj}'); a('s_lshl_b32 s88, s88, 5')
        a('v_mov_b32 v251, 0')
        for h in range(2):
            for i in range(4):
                a(f'v_mov_b32 v{252+i}, s{64+2*(4*h+i)}' if 4*h+i < 7 else 'v_mov_b32 v255, s44')
            a(f'buffer_store_dwordx4 v[252:255], v251, s[84:87], s88 offen offset:{16*h}')
            a('s_nop 1')
        a('s_mov_b64 exec, s[90:91]')

def xstore(a, instr):
    l1 = a.newlabel('XS'); l2 = a.newlabel('XD')
    a('s_cmp_lg_u32 s42, 0')
    a(f's_cbranch_scc1 {l1}')
    a(instr)
    a(f's_branch {l2}')
    a.label(l1)
    a(instr + ' sc1')
    a.label(l2)

def maxops(regs, t):
    regs = list(regs)
    ops = [f'v_max3_u32 v{t}, v{regs[0]}, v{regs[1]}, v{regs[2]}']
    i = 3
    while i + 1 < len(regs):
        ops.append(f'v_max3_u32 v{t}, v{t}, v{regs[i]}, v{regs[i+1]}'); i += 2
    if i < len(regs):
        ops.append(f'v_max_u32 v{t}, v{t}, v{regs[i]}')
    ops.append(f'v_cmp_eq_u32 vcc, -1, v{t}')
    return ops

def poll_setup(a, VL, vaddr, vlds, rel_sreg):
    a(f's_add_u32 s97, s40, s{rel_sreg}')
    a('s_add_u32 s97, s97, 1')
    a('s_and_b32 s97, s97, 7')
    a('s_lshl_b32 s98, s97, 4')
    a('s_add_u32 s98, s98, s41')
    a('s_mul_i32 s98, s98, 640')
    a(f'v_add_u32 v{vaddr}, s98, v{VL}')
    a('s_mul_i32 s98, s97, 640')
    a(f's_add_u32 s98, s98, {SLOT}')
    a(f'v_add_u32 v{vlds}, s98, v{VL}')

PSTEP = 81920
PFL = os.environ.get('PFL', 'sc1')
PSLP = int(os.environ.get('PSLP', '12'))
def touch_part(a, vaddrs, d, ahead):
    if PSLP: return
    a(f's_add_u32 s98, s96, {PSTEP*ahead}')
    a('s_mov_b32 exec_hi, 0xff')
    for va in vaddrs:
        a(f'buffer_load_dwordx4 v[{d}:{d+3}], v{va}, s[92:95], s98 offen')
    a('s_mov_b32 exec_hi, -1')

def poll_remote(a, tag, srcs, t, done):
    a('s_mov_b32 exec_hi, 0xff')
    if PSLP: a(f's_sleep {PSLP - (2 if tag == "R" else 0)}')
    a.label(f'C_pr{tag}')
    for va, vl, d in srcs:
        a(f'buffer_load_dwordx4 v[{d}:{d+3}], v{va}, s[92:95], s96 offen '+PFL)
    a('s_waitcnt vmcnt(0)')
    regs = [r for va, vl, d in srcs for r in range(d, d+4)]
    for o in maxops(regs, t): a(o)
    a(f's_cbranch_vccz C_pk{tag}')
    a('s_sub_u32 s44, s44, 1')
    a(f's_cbranch_scc0 C_pr{tag}')
    a(f's_branch {done}')
    a.label(f'C_pk{tag}')
    for va, vl, d in srcs:
        a(f'ds_write_b128 v{vl}, v[{d}:{d+3}]')
    a('s_mov_b32 exec_hi, -1')
    a(f's_add_u32 s96, s96, {PSTEP}')
    a('s_waitcnt lgkmcnt(0)')
    a('s_barrier')

def chain_body(a, done, kvwait=None):
    a('s_mov_b32 s43, 0')
    if DIAG:
        srd(a, 84, 58, DBGT, 256*8*64*32)
    a('s_cmp_lt_u32 s33, 4')
    a('s_cbranch_scc1 C_attn')
    a('s_cmp_eq_u32 s33, 7')
    a('s_cbranch_scc1 C_red')
    MF, AC, VL = 160, 200, 216
    a('s_cmp_eq_u32 s33, 4')
    a('s_cselect_b32 s4, s48, s50'); a('s_cselect_b32 s5, s49, s51')
    a('s_cmp_eq_u32 s33, 6')
    a('s_cselect_b32 s4, s52, s4'); a('s_cselect_b32 s5, s53, s5')
    a(f's_mov_b32 s6, {640*8192}'); a('s_mov_b32 s7, 0x20000')
    a('s_lshr_b32 s46, s41, 2')
    a('s_lshl_b32 s3, s40, 2')
    a('s_add_u32 s46, s46, s3')
    a('s_and_b32 s47, s41, 3')
    a(f'v_lshlrev_b32 v{VL}, 4, v0')
    a('s_lshl_b32 s3, s46, 8')
    a('s_lshl_b32 s8, s47, 6')
    a('s_add_u32 s3, s3, s8')
    a('v_lshrrev_b32 v240, 2, v0')
    a('v_lshlrev_b32 v240, 13, v240')
    a('v_and_b32 v239, 3, v0')
    a('v_lshl_add_u32 v240, v239, 4, v240')
    a('v_add_u32 v240, s3, v240')
    a('s_sub_u32 s8, s33, 4')
    a('s_mul_i32 s8, s8, 20480')
    a(f's_add_u32 s8, s8, {KVB}')
    a('v_lshrrev_b32 v238, 4, v0')
    a('v_bfe_u32 v237, v0, 2, 2')
    a('v_lshl_add_u32 v238, v238, 3, v237')
    a('v_lshlrev_b32 v238, 6, v238')
    a('v_lshl_add_u32 v238, v239, 3, v238')
    a('v_add_u32 v238, s8, v238')
    for half in range(2):
        for j in range(20):
            a(f's_add_u32 m0, s8, {j*1024}')
            a(f's_mov_b32 s3, {(half*320 + j*16)*8192}')
            a('buffer_load_dwordx4 v240, s[4:7], s3 offen lds')
        a('s_waitcnt vmcnt(0)')
        for k2 in range(10):
            kk = half*10 + k2
            for z in range(2):
                r = (kk*2+z)*4
                a(f'ds_read_b64_tr_b16 v[{r}:{r+1}], v238 offset:{k2*2048 + 32*z}')
                a(f'ds_read_b64_tr_b16 v[{r+2}:{r+3}], v238 offset:{k2*2048 + 256 + 32*z}')
        a('s_waitcnt lgkmcnt(0)')
    a('s_barrier')
    srd(a, 8, 58, MEMB, 64*MEMSLOT)
    a('s_mul_i32 s16, s40, 10240')
    a('s_cmp_eq_u32 s33, 6')
    a('s_cbranch_scc1 C_vsetup')
    srd(a, 12, 58, CQK, 64*32*4096)
    a('s_lshl_b32 s3, s47, 10')
    a('s_sub_u32 s17, s33, 4'); a('s_lshl_b32 s17, s17, 7'); a('s_add_u32 s3, s3, s17')
    a('s_lshl_b32 s17, s46, 12'); a('s_add_u32 s3, s3, s17')
    a('s_mov_b32 s18, 131072')
    a('s_mov_b32 s20, 0x00ff00ff'); a('s_mov_b32 s21, 0x00ff00ff')
    a('s_branch C_qkv_go')
    a.label('C_vsetup')
    srd(a, 12, 58, CV, 64*32*2048)
    a('s_lshl_b32 s3, s47, 9')
    a('s_lshl_b32 s17, s46, 11'); a('s_add_u32 s3, s3, s17')
    a('s_mov_b32 s18, 65536')
    a('s_mov_b32 s20, -1'); a('s_mov_b32 s21, 0')
    a.label('C_qkv_go')
    a(f'v_add_u32 v217, s3, v{VL}')
    a(f'v_add_u32 v218, 4096, v{VL}')
    a(f'v_add_u32 v219, 8192, v{VL}')
    a('s_setprio 2')
    a('s_mov_b32 s17, 0')
    srd(a, 24, 58, KF, 0x2000000)
    a('s_lshl_b32 s28, s40, 14')
    a('s_lshl_b32 s29, s40, 15')
    a('s_add_u32 s29, s29, 0x1000000')
    def frag_rel(q):
        head, f, isv = q >> 4, q & 7, (q >> 3) & 1
        return isv, (head*8192 + f*1024 if isv else head*4096 + (f >> 2)*131072 + (f & 3)*1024)
    def dma_kv(tag):
        rng = [(0, 22), (22, 43), (43, 64)]
        for m in range(3):
            if tag[0] == 'V' and m < 2: continue
            if tag[0] == 'Q' and m == 2: continue
            if tag[0] != 'V' and m < (1 if tag[0] == 'Q' else 2):
                a(f's_cmp_lg_u32 s33, {4+m}')
                a(f's_cbranch_scc1 C_dma{tag}{m+1}')
            for q in range(*rng[m]):
                isv, rel = frag_rel(q)
                a(f's_mov_b32 m0, {KVB + q*1024}')
                a(f's_add_u32 s34, s{29 if isv else 28}, {rel}')
                a(f'buffer_load_dwordx4 v{VL}, s[24:27], s34 offen sc1 lds')
                if PACE and tag != '0': a(f's_sleep {PACE}')
            a(f's_branch C_dmae{tag}')
            a.label(f'C_dma{tag}{m+1}')
        a.label(f'C_dmae{tag}')
        a('s_add_u32 s28, s28, 262144')
        a('s_add_u32 s29, s29, 262144')
    a('s_lshl_b32 s31, s41, 2')
    a('s_lshl_b32 s3, s33, 1')
    a('s_add_u32 s31, s31, s3')
    a('s_sub_u32 s31, s31, 8')
    a('s_lshr_b32 s34, s31, 4')
    a('s_and_b32 s35, s31, 7')
    a('s_bfe_u32 s31, s31, 0x10003')
    a('s_lshl_b32 s30, s34, 13')
    a('s_lshl_b32 s36, s35, 10')
    a('s_add_u32 s30, s30, s36')
    a('s_lshl_b32 s34, s34, 12')
    a('s_lshr_b32 s36, s35, 2'); a('s_lshl_b32 s36, s36, 17'); a('s_add_u32 s34, s34, s36')
    a('s_and_b32 s36, s35, 3'); a('s_lshl_b32 s36, s36, 10'); a('s_add_u32 s34, s34, s36')
    a('s_cmp_eq_u32 s31, 0')
    a('s_cmov_b32 s30, s34')
    def warm(tag, ahead):
        a('s_cmp_eq_u32 s33, 6')
        a(f's_cbranch_scc1 C_wd{tag}')
        a('s_cmp_eq_u32 s31, 0')
        a('s_cselect_b32 s34, s28, s29')
        a('s_add_u32 s34, s34, s30')
        a(f's_add_u32 s34, s34, {262144*ahead}')
        a(f'buffer_load_dwordx4 v[232:235], v{VL}, s[24:27], s34 offen')
        a(f'buffer_load_dwordx4 v[232:235], v{VL}, s[24:27], s34 offen offset:1024')
        a.label(f'C_wd{tag}')
    srd(a, 60, 58, MEMB, PART - MEMB)
    a('s_lshl_b32 s36, s41, 10')
    a('s_lshl_b32 s37, s40, 14'); a('s_add_u32 s37, s37, s36'); a(f's_add_u32 s37, s37, {CQK - MEMB}')
    a('s_lshl_b32 s38, s40, 13'); a('s_add_u32 s38, s38, s36'); a(f's_add_u32 s38, s38, {CV - MEMB}')
    a('s_mov_b32 s39, 65536')
    a('s_mul_i32 s100, s40, 10240'); a('s_add_u32 s100, s100, s36')
    a('s_cmp_lt_u32 s41, 8')
    a('s_cbranch_scc1 C_tch_ok')
    a('s_sub_u32 s38, s100, 8192')
    a(f's_mov_b32 s39, {MEMSLOT}')
    a.label('C_tch_ok')
    a('s_add_u32 s100, s100, 8192')
    def touch_x(tag):
        a('s_cmp_lg_u32 s33, 6')
        a(f's_cbranch_scc1 C_tx{tag}')
        a(f'buffer_load_dwordx4 v[232:235], v{VL}, s[60:63], s37 offen')
        a(f'buffer_load_dwordx4 v[232:235], v{VL}, s[60:63], s38 offen')
        a('s_add_u32 s37, s37, 131072')
        a('s_add_u32 s38, s38, s39')
        a('s_cmp_gt_u32 s41, 1')
        a(f's_cbranch_scc1 C_tx{tag}')
        a(f'buffer_load_dwordx4 v[232:235], v{VL}, s[60:63], s100 offen')
        a(f's_add_u32 s100, s100, {MEMSLOT}')
        a.label(f'C_tx{tag}')
    touch_x('a'); touch_x('b')
    if kvwait: kvwait(a, 'i')
    warm('a', 1); warm('b', 2)
    dma_kv('0')
    a('s_waitcnt vmcnt(0)')
    a('s_barrier')
    def mload(j):
        a(f'buffer_load_dwordx4 v[{MF+4*j}:{MF+3+4*j}], v{VL if j < 4 else 218 if j < 8 else 219}, s[8:11], s16 offen offset:{1024*(j%4)} sc1')
    for isV in (False, True):
        sfx = 'V' if isV else 'Q'
        if not isV:
            a('s_cmp_eq_u32 s33, 6')
            a('s_cbranch_scc1 C_qkv_loopV')
        a.label(f'C_qkv_loop{sfx}')
        stamp(a, 0)
        for j in range(10):
            mload(j)
        def chk(g): return maxops(range(MF+8*g, MF+8+8*g), 222)
        def mm(kk, z):
            j = kk >> 1
            D = AC + (z*2 + (kk & 1))*4
            W = (kk*2+z)*4
            C = '0' if kk < 2 else f'v[{D}:{D+3}]'
            if isV:
                a(f'v_mfma_f32_16x16x32_bf16 v[{D}:{D+3}], v[{MF+4*j}:{MF+3+4*j}], v[{W}:{W+3}], {C}')
            else:
                a(f'v_mfma_f32_16x16x32_bf16 v[{D}:{D+3}], v[{W}:{W+3}], v[{MF+4*j}:{MF+3+4*j}], {C}')
        a.label(f'C_qchk{sfx}0')
        a('s_waitcnt vmcnt(8)')
        for o in chk(0): a(o)
        a(f's_cbranch_vccnz C_qret{sfx}0')
        stamp(a, 1)
        for g in range(5):
            a.label(f'C_qmm{sfx}{g}')
            seq = [(4*g+i, z) for i in range(4) for z in range(2)]
            for n, (kk, z) in enumerate(seq):
                mm(kk, z)
                if g < 4:
                    ops = chk(g+1)
                    if n == 3: a(f's_waitcnt vmcnt({2*(3-g)})')
                    if n == 4: a(ops[0]); a(ops[1])
                    if n == 5: a(ops[2]); a(ops[3])
                    if n == 6: a(ops[4])
            if g < 4:
                a(f's_cbranch_vccnz C_qret{sfx}{g+1}')
                if g == 3: stamp(a, 2)
        a('s_nop 6')
        for z in range(2):
            D1, D2 = AC + z*8, AC + z*8 + 4
            if isV:
                for r in range(4):
                    a(f'v_permlane32_swap_b32 v{D2+r}, v{224+r}')
                for r in range(4):
                    a(f'v_add_f32 v{D1+r}, v{D1+r}, v{224+r}')
            else:
                for r in range(4):
                    a(f'v_add_f32_dpp v{D1+r}, v{D2+r}, v{D1+r} row_ror:8 row_mask:0xf bank_mask:0xf')
        for z in range(2):
            D1 = AC + z*8
            a(f'v_cvt_pk_bf16_f32 v{224+2*z}, v{D1}, v{D1+1}')
            a(f'v_cvt_pk_bf16_f32 v{225+2*z}, v{D1+2}, v{D1+3}')
        for r in range(4):
            a(f'v_min_u32 v{224+r}, -2, v{224+r}')
        a('s_mov_b64 exec, s[20:21]')
        xstore(a, 'buffer_store_dwordx4 v[224:227], v217, s[12:15], s17 offen')
        a('s_mov_b64 exec, -1')
        stamp(a, 3)
        a('s_add_u32 s43, s43, 1')
        a('s_cmp_ge_u32 s43, 64')
        a(f's_cbranch_scc1 {done}')
        a('s_add_u32 s17, s17, s18')
        a(f's_add_u32 s16, s16, {MEMSLOT}')
        a('s_barrier')
        if DPOS == 1: a('s_barrier')
        a('s_setprio 0')
        if DPOS == 0: a(f's_sleep {DSLP}')
        stamp(a, 4)
        dma_kv(sfx)
        touch_x(sfx)
        warm(sfx, 1)
        stamp(a, 5)
        a('s_setprio 2')
        if DPOS == 0: a('s_barrier')
        if kvwait: kvwait(a, sfx)
        a('s_barrier')
        a('s_waitcnt vmcnt(0)')
        flush(a, 1)
        a('s_barrier')
        a(f's_branch C_qkv_loop{sfx}')
        for g in range(5):
            a.label(f'C_qret{sfx}{g}')
            a('s_sub_u32 s44, s44, 1')
            a(f's_cbranch_scc1 {done}')
            a('s_waitcnt vmcnt(0)')
            for j in range(2*g, 10):
                mload(j)
            if g == 0:
                a(f's_branch C_qchk{sfx}0')
            else:
                a(f's_waitcnt vmcnt({2*(4-g)})')
                for o in chk(g): a(o)
                a(f's_cbranch_vccz C_qmm{sfx}{g}')
                a(f's_branch C_qret{sfx}{g}')

    a.label('C_red')
    srd(a, 8, 58, PART, 64*163840)
    srd(a, 12, 58, MEMB, 64*MEMSLOT)
    a('v_lshlrev_b32 v1, 4, v0')
    a('v_lshlrev_b32 v2, 3, v0')
    a('s_lshl_b32 s3, s40, 4'); a('s_add_u32 s3, s3, s41'); a('s_mul_i32 s3, s3, 640')
    a('v_add_u32 v3, s3, v2')
    a('s_mul_i32 s3, s40, 640'); a(f's_add_u32 s3, s3, {SLOT}')
    a('v_add_u32 v7, s3, v2')
    a('s_mul_i32 s16, s40, 10240')
    for P_, add in ((4, 0), (5, 8)):
        a('v_lshrrev_b32 v8, 3, v0')
        if add: a(f'v_add_u32 v8, {add}, v8')
        a('s_mul_i32 s3, s41, 40')
        a('v_lshl_add_u32 v8, v8, 2, s3')
        a(f'v_and_b32 v{P_}, 7, v0')
        a(f'v_lshlrev_b32 v{P_}, 4, v{P_}')
        a('v_lshrrev_b32 v6, 6, v8');  a(f'v_lshl_add_u32 v{P_}, v6, 10, v{P_}')
        a('v_bfe_u32 v6, v8, 3, 2');   a(f'v_lshl_add_u32 v{P_}, v6, 8, v{P_}')
        a('v_bfe_u32 v6, v8, 5, 1');   a(f'v_lshl_add_u32 v{P_}, v6, 7, v{P_}')
        a('v_bfe_u32 v6, v8, 2, 1');   a(f'v_lshl_add_u32 v{P_}, v6, 3, v{P_}')
        a(f'v_add_u32 v{P_}, s16, v{P_}')
    srd(a, 92, 58, PART, 64*163840)
    a('s_mov_b32 s96, 0')
    a('s_mov_b32 s22, 0x00003f80')
    a('s_mov_b32 s23, 0x3f800000')
    a('s_mov_b32 s3, 6')
    poll_setup(a, 1, 112, 113, 3)
    for r in range(4): a(f'v_mov_b32 v{120+r}, 0')
    touch_part(a, [112], 124, 0); touch_part(a, [112], 124, 1)
    a('s_mov_b32 s16, 0')
    a(f's_mov_b32 s17, {MEMSLOT}')
    a('s_setprio 3')
    a('s_barrier')
    a('s_barrier')
    a.label('C_red_loop')
    a('s_barrier')
    a('s_barrier')
    stamp(a, 0)
    for w in range(4):
        a(f'ds_read_b128 v[{16+4*w}:{19+4*w}], v1 offset:{1280*w}')
    for w in range(4):
        a(f'ds_read_b128 v[{32+4*w}:{35+4*w}], v1 offset:{1280*w+1024}')
    for b, n in ((16, 4), (32, 0)):
        a(f's_waitcnt lgkmcnt({n})')
        for r in range(4):
            a(f'v_add_f32 v{b+r}, v{b+r}, v{b+4+r}')
            a(f'v_add_f32 v{b+8+r}, v{b+8+r}, v{b+12+r}')
        for r in range(4):
            a(f'v_add_f32 v{b+r}, v{b+r}, v{b+8+r}')
        a(f'v_cvt_pk_bf16_f32 v{b}, v{b}, v{b+1}')
        a(f'v_cvt_pk_bf16_f32 v{b+1}, v{b+2}, v{b+3}')
        a(f'v_min_u32 v{b}, -2, v{b}')
        a(f'v_min_u32 v{b+1}, -2, v{b+1}')
        if b == 32: a('s_mov_b64 exec, 0xffff')
        a(f'buffer_store_dwordx2 v[{b}:{b+1}], v3, s[8:11], s16 offen offset:{0 if b == 16 else 512} sc1')
    stamp(a, 1)
    a('ds_write_b64 v7, v[32:33] offset:512')
    a('s_mov_b64 exec, -1')
    a('ds_write_b64 v7, v[16:17]')
    poll_remote(a, 'R', [(112, 113, 116)], 114, done)
    stamp(a, 2)
    for xx in range(8):
        a(f'ds_read_b64 v[{48+2*xx}:{49+2*xx}], v2 offset:{SLOT+640*xx}')
    for xx in range(8):
        a(f'ds_read_b64 v[{80+2*xx}:{81+2*xx}], v2 offset:{SLOT+640*xx+512}')
    for b, o, ad, base_cnt in ((48, 20, 4, 8), (80, 28, 5, 0)):
        for xx in range(8):
            a(f's_waitcnt lgkmcnt({base_cnt+7-xx})')
            for p in range(2):
                if xx == 0:
                    a(f'v_lshlrev_b32 v{o+2*p}, 16, v{b+p}')
                    a(f'v_and_b32 v{o+2*p+1}, 0xffff0000, v{b+p}')
                else:
                    a(f'v_dot2c_f32_bf16 v{o+2*p}, s22, v{b+2*xx+p}')
                    a(f'v_dot2c_f32_bf16 v{o+2*p+1}, s23, v{b+2*xx+p}')
        a('s_nop 2')
        a(f'v_cvt_pk_bf16_f32 v{o+4}, v{o}, v{o+1}')
        a(f'v_cvt_pk_bf16_f32 v{o+5}, v{o+2}, v{o+3}')
        a(f'v_min_u32 v{o+4}, -2, v{o+4}')
        a(f'v_min_u32 v{o+5}, -2, v{o+5}')
        if b == 80: a('s_mov_b64 exec, 0xffff')
        xstore(a, f'buffer_store_dwordx2 v[{o+4}:{o+5}], v{ad}, s[12:15], s17 offen')
    a('s_mov_b64 exec, -1')
    stamp(a, 3)
    a('s_barrier')
    touch_part(a, [112], 124, 1)
    flush(a)
    a('s_add_u32 s43, s43, 1')
    a('s_cmp_ge_u32 s43, 63')
    a(f's_cbranch_scc1 {done}')
    a(f's_add_u32 s16, s16, {PSTEP}')
    a(f's_add_u32 s17, s17, {MEMSLOT}')
    a('s_branch C_red_loop')

    KX, VX, WO, Q, VM, S, BIAS, P, O, OB, RR = 0, 32, 64, 112, 128, 144, 156, 160, 168, 200, 216
    VL = 228
    a.label('C_attn')
    a('s_lshl_b32 s46, s40, 2')
    a('s_add_u32 s46, s46, s33')
    a(f'v_lshlrev_b32 v{VL}, 4, v0')
    srd(a, 4, 54, 0, 4096*1280)
    a('s_mul_i32 s3, s46, 163840')
    a('s_mul_i32 s8, s41, 80')
    a('s_add_u32 s3, s3, s8')
    a('s_mul_i32 s8, s33, 12288')
    a('s_add_u32 s8, s8, 81920')
    a('s_mov_b32 s9, 0x2aaaaaab')
    for j in range(12):
        a(f'v_add_u32 v240, {64*j}, v0')
        a('v_mul_hi_u32 v241, v240, s9')
        a('v_mul_u32_u24 v242, 6, v241')
        a('v_sub_u32 v242, v240, v242')
        a('v_mul_u32_u24 v241, 1280, v241')
        a('v_lshl_add_u32 v241, v242, 4, v241')
        a(f's_add_u32 m0, s8, {j*1024}')
        a('s_nop 0')
        a('buffer_load_dwordx4 v241, s[4:7], s3 offen lds')
    a('v_lshrrev_b32 v238, 2, v0')
    a('v_mul_u32_u24 v238, 96, v238')
    a('v_and_b32 v239, 3, v0')
    a('v_lshl_add_u32 v238, v239, 3, v238')
    a('v_add_u32 v238, s8, v238')
    a('s_waitcnt vmcnt(0)')
    for tile in range(3):
        for u in range(4):
            r = WO + (tile*4+u)*4
            a(f'ds_read_b64_tr_b16 v[{r}:{r+1}], v238 offset:{u*3072 + tile*32}')
            a(f'ds_read_b64_tr_b16 v[{r+2}:{r+3}], v238 offset:{u*3072 + 1536 + tile*32}')
    a('s_waitcnt lgkmcnt(0)')
    a('s_barrier')
    srd(a, 16, 58, CQK, 64*32*4096)
    srd(a, 20, 58, CV, 64*32*2048)
    a('s_lshl_b32 s3, s33, 14')
    a(f's_add_u32 s3, s3, {KVB}')
    a(f'v_add_u32 v229, s3, v{VL}')
    a('v_and_b32 v230, 31, v0')
    a('v_lshlrev_b32 v230, 4, v230')
    a('v_and_b32 v240, 7, v0')
    a('v_lshlrev_b32 v240, 4, v240')
    a('v_lshrrev_b32 v241, 4, v0')
    a('v_lshl_add_u32 v240, v241, 7, v240')
    a('s_mul_i32 s3, s33, 1280')
    a('v_add_u32 v240, s3, v240')
    a(f'v_add_u32 v242, {DUMP}, v{VL}')
    a('v_and_b32 v241, 15, v0')
    a('v_cmp_gt_u32 vcc, 8, v241')
    a('v_cmp_gt_u32 s[10:11], 32, v0')
    a('s_and_b64 s[10:11], s[10:11], vcc')
    a('v_add_u32 v241, 512, v240')
    a('v_add_u32 v243, 1024, v240')
    a('v_cndmask_b32 v231, v242, v240, vcc')
    a('v_cndmask_b32 v232, v242, v241, vcc')
    a('v_cndmask_b32 v233, v242, v243, s[10:11]')
    a('v_mov_b32 v234, 0xf149f2ca')
    a('v_cmp_gt_u32 vcc, 32, v0')
    a('s_nop 1')
    for r in range(4):
        a(f'v_cndmask_b32 v{BIAS+r}, 0, v234, vcc')
    for r in range(16):
        a(f'v_mov_b32 v{VM+r}, 0')
    a('s_lshl_b32 s26, s46, 12')
    a('s_lshl_b32 s27, s46, 11')
    a(f's_mov_b32 s28, 0x{CEXP:x}')
    srd(a, 92, 58, PART, 64*163840)
    a('s_mov_b32 s96, 0')
    poll_setup(a, VL, 237, 238, 33)
    a('s_add_u32 s3, s33, 4')
    poll_setup(a, VL, 166, 167, 3)
    for r in range(4): a(f'v_mov_b32 v{244+r}, 0')
    touch_part(a, [237, 166], 248, 0); touch_part(a, [237, 166], 248, 1)
    def prefetch():
        for f in range(16):
            a(f'ds_read_b128 v[{KX+4*f}:{KX+4*f+3}], v229 offset:{f*1024}')
        a('s_waitcnt lgkmcnt(0)')
    def ld_qk():
        for u in range(4):
            a(f'buffer_load_dwordx4 v[{Q+4*u}:{Q+4*u+3}], v{VL}, s[16:19], s26 offen offset:{u*1024} sc1')
    def ld_vm():
        a('s_mov_b32 exec_lo, 0')
        for u in range(4):
            a(f'buffer_load_dwordx4 v[{VM+4*u}:{VM+4*u+3}], v230, s[20:23], s27 offen offset:{u*512} sc1')
        a('s_mov_b32 exec_lo, -1')
    a('s_setprio 1')
    a('s_barrier')
    prefetch()
    a.label('C_at_loop')
    a('s_barrier')
    stamp(a, 0)
    ld_qk()
    ld_vm()
    a.label('C_at_chk')
    a('s_waitcnt vmcnt(4)')
    m_, t_, l_ = 234, 235, 236
    for o in maxops(range(Q, Q+16), m_): a(o)
    a('s_cbranch_vccnz C_at_ret')
    stamp(a, 1)
    def smm(t3, u):
        A = (KX + (t3*4+u)*4) if t3 < 2 else Q + 4*u
        acc = S + 4*t3
        C = (f'v[{BIAS}:{BIAS+3}]' if t3 == 2 else '0') if u == 0 else f'v[{acc}:{acc+3}]'
        a(f'v_mfma_f32_16x16x32_bf16 v[{acc}:{acc+3}], v[{A}:{A+3}], v[{Q+4*u}:{Q+4*u+3}], {C}')
    for u in range(4): smm(0, u)
    a('s_waitcnt vmcnt(0)')
    vops = maxops(range(VM, VM+16), t_)
    for u in range(4):
        smm(1, u)
        a(vops[2*u]); a(vops[2*u+1])
    a(vops[8])
    a('s_cbranch_vccnz C_at_vret')
    a.label('C_at_vok')
    stamp(a, 3)
    smm(2, 0)
    a(f'v_max3_f32 v{m_}, v{S}, v{S+1}, v{S+2}')
    smm(2, 1)
    a(f'v_max_f32 v{m_}, v{m_}, v{S+3}')
    smm(2, 2)
    smm(2, 3)
    a('s_nop 3')
    a(f'v_max3_f32 v{m_}, v{m_}, v{S+4}, v{S+5}')
    a(f'v_max3_f32 v{m_}, v{m_}, v{S+6}, v{S+7}')
    a('s_nop 1')
    a(f'v_max3_f32 v{m_}, v{m_}, v{S+8}, v{S+9}')
    a(f'v_max3_f32 v{m_}, v{m_}, v{S+10}, v{S+11}')
    for sw in ('32', '16'):
        a(f'v_mov_b32 v{t_}, v{m_}')
        a('s_nop 1')
        a(f'v_permlane{sw}_swap_b32 v{m_}, v{t_}')
        a(f'v_max_f32 v{m_}, v{m_}, v{t_}')
    a(f'v_mul_f32 v{m_}, s28, v{m_}')
    for i in range(8):
        a(f'v_fma_f32 v{S+i}, v{S+i}, s28, -v{m_}')
    for i in range(8):
        a(f'v_exp_f32 v{S+i}, v{S+i}')
    for i in range(8, 12):
        a(f'v_fma_f32 v{S+i}, v{S+i}, s28, -v{m_}')
    for i in range(4):
        a(f'v_cvt_pk_bf16_f32 v{P+i}, v{S+2*i}, v{S+2*i+1}')
    def pvx(ct): a(f'v_mfma_f32_16x16x32_bf16 v[{O+4*ct}:{O+4*ct+3}], v[{VX+4*ct}:{VX+4*ct+3}], v[{P}:{P+3}], 0')
    def pvm(ct): a(f'v_mfma_f32_16x16x16_bf16 v[{O+4*ct}:{O+4*ct+3}], v[{VM+2*ct}:{VM+2*ct+1}], v[{P+4}:{P+5}], v[{O+4*ct}:{O+4*ct+3}]')
    def cvo(u2):
        for hh in range(2):
            o = O + 4*(2*u2+hh)
            a(f'v_cvt_pk_bf16_f32 v{OB+4*u2+2*hh}, v{o}, v{o+1}')
            a(f'v_cvt_pk_bf16_f32 v{OB+4*u2+2*hh+1}, v{o+2}, v{o+3}')
    def wom(uu):
        for tile in range(3):
            C = '0' if uu == 0 else f'v[{RR+4*tile}:{RR+4*tile+3}]'
            a(f'v_mfma_f32_16x16x32_bf16 v[{RR+4*tile}:{RR+4*tile+3}], v[{WO+(tile*4+uu)*4}:{WO+(tile*4+uu)*4+3}], v[{OB+4*uu}:{OB+4*uu+3}], {C}')
    def ad(i): a(f'v_add_f32 v{l_}, v{l_}, v{S+i}')
    a(f'v_exp_f32 v{S+8}, v{S+8}')
    a(f'v_exp_f32 v{S+9}, v{S+9}')
    pvx(0)
    a(f'v_exp_f32 v{S+10}, v{S+10}')
    pvx(1)
    a(f'v_exp_f32 v{S+11}, v{S+11}')
    pvx(2)
    a(f'v_cvt_pk_bf16_f32 v{P+4}, v{S+8}, v{S+9}')
    a(f'v_cvt_pk_bf16_f32 v{P+5}, v{S+10}, v{S+11}')
    pvx(3)
    a(f'v_add_f32 v{l_}, v{S}, v{S+1}'); ad(2); ad(3)
    pvm(0); ad(4); ad(5)
    pvm(1); ad(6); ad(7)
    pvm(2); ad(8); ad(9)
    pvm(3); ad(10); ad(11)
    pvx(4)
    a(f'v_mov_b32 v{t_}, v{l_}')
    pvx(5)
    cvo(0)
    pvx(6)
    a(f'v_permlane32_swap_b32 v{l_}, v{t_}')
    pvx(7)
    cvo(1)
    pvm(4)
    a(f'v_add_f32 v{l_}, v{l_}, v{t_}')
    pvm(5)
    a(f'v_mov_b32 v{t_}, v{l_}')
    pvm(6)
    pvm(7)
    wom(0)
    a(f'v_permlane16_swap_b32 v{l_}, v{t_}')
    a(f'v_add_f32 v{l_}, v{l_}, v{t_}')
    wom(1)
    a(f'v_rcp_f32 v{l_}, v{l_}')
    cvo(2)
    cvo(3)
    wom(2)
    wom(3)
    a('s_nop 5')
    for r in range(12):
        a(f'v_mul_f32 v{RR+r}, v{RR+r}, v{l_}')
    for tile in range(3):
        a(f'ds_write_b128 v{231+tile}, v[{RR+4*tile}:{RR+4*tile+3}]')
    a('s_waitcnt lgkmcnt(0)')
    stamp(a, 4)
    a('s_barrier')
    a('s_cmp_gt_u32 s33, 1')
    a('s_cbranch_scc1 C_p1')
    poll_remote(a, 'A2', [(237, 238, 240), (166, 167, O)], 239, done)
    touch_part(a, [237, 166], 248, 1)
    a('s_branch C_p1e')
    a.label('C_p1')
    poll_remote(a, 'A1', [(237, 238, 240)], 239, done)
    touch_part(a, [237], 248, 1)
    a.label('C_p1e')
    flush(a)
    a('s_add_u32 s43, s43, 1')
    a('s_cmp_ge_u32 s43, 63')
    a(f's_cbranch_scc1 {done}')
    a('s_add_u32 s26, s26, 131072')
    a('s_add_u32 s27, s27, 65536')
    a('s_barrier')
    prefetch()
    a('s_branch C_at_loop')
    a.label('C_at_ret')
    a('s_sub_u32 s44, s44, 1')
    a(f's_cbranch_scc1 {done}')
    a('s_waitcnt vmcnt(0)')
    ld_qk()
    ld_vm()
    a('s_branch C_at_chk')
    a.label('C_at_vret')
    a('s_sub_u32 s44, s44, 1')
    a(f's_cbranch_scc1 {done}')
    ld_vm()
    a('s_waitcnt vmcnt(0)')
    for o in maxops(range(VM, VM+16), t_): a(o)
    a('s_cbranch_vccz C_at_vok')
    a('s_branch C_at_vret')

def register(a, done):
    a(f's_load_dwordx8 s[48:55], s[0:1], {KA["Wq"]}')
    a(f's_load_dwordx4 s[56:59], s[0:1], {KA["dbg"]}')
    a('v_lshrrev_b32 v1, 6, v0')
    a('s_nop 0')
    a('v_readfirstlane_b32 s33, v1')
    a('v_and_b32 v0, 63, v0')
    a('s_mov_b32 s44, 0x40000')
    a('s_waitcnt lgkmcnt(0)')
    a('s_cmp_lg_u32 s33, 0')
    a('s_cbranch_scc1 R_wait_role')
    srd(a, 4, 58, CNT + 272*128, 1024)
    a('s_getreg_b32 s40, hwreg(HW_REG_XCC_ID)')
    a('s_and_b32 s40, s40, 7')
    a('s_mov_b64 exec, 1')
    a('s_lshl_b32 s3, s40, 7')
    a('v_mov_b32 v1, s3')
    a('v_mov_b32 v2, 1')
    a('buffer_atomic_add v2, v1, s[4:7], 0 offen sc0')
    a('s_waitcnt vmcnt(0)')
    a('v_readfirstlane_b32 s41, v2')
    a('s_mov_b64 exec, 0xff')
    a('v_lshlrev_b32 v1, 7, v0')
    a.label('R_poll')
    a('s_sub_u32 s44, s44, 1')
    a(f's_cbranch_scc1 {done}')
    a('buffer_load_dword v4, v1, s[4:7], 0 offen sc1')
    a('s_waitcnt vmcnt(0)')
    a('s_mov_b32 s3, 0')
    a('s_mov_b32 s45, 0')
    for i in range(8):
        a(f'v_readlane_b32 s8, v4, {i}')
        a(f's_cmp_gt_u32 s40, {i}')
        a('s_cselect_b32 s9, s8, 0')
        a('s_add_u32 s45, s45, s9')
        a('s_add_u32 s3, s3, s8')
    a('s_cmp_lt_u32 s3, 256')
    a('s_cbranch_scc1 R_poll')
    a('s_add_u32 s45, s45, s41')
    a('v_cmp_ne_u32 vcc, 32, v4')
    a('s_mov_b32 s42, 0')
    a('s_cmp_eq_u64 vcc, 0')
    if not os.environ.get('FORCE_SLOW'):
        a('s_cbranch_scc1 R_fast')
    else:
        a('s_mul_i32 s45, s45, 37')
        a('s_and_b32 s45, s45, 255')
    a('s_mov_b32 s42, 1')
    a('s_lshr_b32 s40, s45, 5')
    a('s_and_b32 s41, s45, 31')
    a.label('R_fast')
    a('s_mov_b64 exec, 1')
    a('v_mov_b32 v4, s40'); a('v_mov_b32 v5, s41'); a('v_mov_b32 v6, s42'); a('v_mov_b32 v7, 0')
    a('v_mov_b32 v1, 0')
    a('ds_write_b128 v1, v[4:7]')
    a('s_waitcnt lgkmcnt(0)')
    a('s_mov_b64 exec, -1')
    a.label('R_wait_role')
    a('s_barrier')
    a('v_mov_b32 v1, 0')
    a('ds_read_b128 v[4:7], v1')
    a('s_waitcnt lgkmcnt(0)')
    a('v_readfirstlane_b32 s40, v4')
    a('v_readfirstlane_b32 s41, v5')
    a('v_readfirstlane_b32 s42, v6')
    a('s_and_b32 s40, s40, 7')
    a('s_and_b32 s41, s41, 31')

def gen_k2(a):
    name = 'chain_kernel'
    kernel_begin(a, name)
    a('s_cmp_ge_u32 s2, 256')
    a('s_cbranch_scc1 K2_done')
    register(a, 'K2_done')
    a('s_cmp_ge_u32 s41, 16')
    a('s_cbranch_scc1 K2_done')
    chain_body(a, 'K2_done')
    a.label('K2_done')
    a('s_endpgm')
    return name, dict(vgpr=256, grid=256, block=512, lds=131072)
```
